```python
import torch

def _softmax(x, axis=-1):
    return torch.softmax(x, dim=axis)
def _gelu(x):
    return torch.nn.functional.gelu(x, approximate="tanh")
def _silu(x):
    return torch.nn.functional.silu(x)
def _sigmoid(x):
    return torch.sigmoid(x)
def _layernorm(x, axis=-1, eps=1e-5):
    m = x.mean(dim=axis, keepdim=True)
    v = x.var(dim=axis, keepdim=True, unbiased=False)
    return (x - m) / torch.sqrt(v + eps)
def _scatter_add(tgt, idx, src, axis=0):
    return tgt.clone().index_add_(axis, idx, src)
def _segment_sum(src, seg, n):
    out = torch.zeros((n,) + src.shape[1:], dtype=src.dtype)
    return out.index_add_(0, seg, src)
def _pad(x, pw):
    flat = tuple(v for pair in reversed(pw) for v in pair)
    return torch.nn.functional.pad(x, flat)

kernel_name = 'gated_mix__gqa_block_cached__gqa_block_cached__decode'

def setup_inputs():

    _w = (lambda a: (lambda t: t.to(torch.bfloat16) if t.is_floating_point() else t)(torch.as_tensor(a)))
    def _A_setup():
        B, Sq, D = 2, 1, 448
        Hq, Hkv, Sk, Dh = 16, 8, 8192, 256
        assert Hq % Hkv == 0, (Hq, Hkv)
        return {
            "x": _w((lambda *s: torch.randn(*s, dtype=torch.bfloat16) * 0.05)(B, Sq, D)),
            "k_cache": _w((lambda *s: torch.randn(*s, dtype=torch.bfloat16) * 6.4)(B, Hkv, Sk, Dh)),
            "v_cache": _w((lambda *s: torch.randn(*s, dtype=torch.bfloat16) * 0.05)(B, Hkv, Sk, Dh)),
            "wq": _w((lambda *s: torch.randn(*s, dtype=torch.bfloat16) * 6.4)(D, Hq * Dh) * (D ** -0.5)),
            "wo": _w((lambda *s: torch.randn(*s, dtype=torch.bfloat16) * 0.05)(Hq * Dh, D) * ((Hq * Dh) ** -0.5)),
        }
    _A_in = _A_setup()

    def _B_setup():
        B, Sq, D = 2, 1, 448
        Hq, Hkv, Sk, Dh = 16, 8, 8192, 256
        assert Hq % Hkv == 0, (Hq, Hkv)
        return {
            "x": _w((lambda *s: torch.randn(*s, dtype=torch.bfloat16) * 0.05)(B, Sq, D)),
            "k_cache": _w((lambda *s: torch.randn(*s, dtype=torch.bfloat16) * 6.4)(B, Hkv, Sk, Dh)),
            "v_cache": _w((lambda *s: torch.randn(*s, dtype=torch.bfloat16) * 0.05)(B, Hkv, Sk, Dh)),
            "wq": _w((lambda *s: torch.randn(*s, dtype=torch.bfloat16) * 6.4)(D, Hq * Dh) * (D ** -0.5)),
            "wo": _w((lambda *s: torch.randn(*s, dtype=torch.bfloat16) * 0.05)(Hq * Dh, D) * ((Hq * Dh) ** -0.5)),
        }
    _B_in = _B_setup()

    return {
        "A_x": _A_in["x"],
        "A_k_cache": _A_in["k_cache"],
        "A_v_cache": _A_in["v_cache"],
        "A_wq": _A_in["wq"],
        "A_wo": _A_in["wo"],
        "B_x": _B_in["x"],
        "B_k_cache": _B_in["k_cache"],
        "B_v_cache": _B_in["v_cache"],
        "B_wq": _B_in["wq"],
        "B_wo": _B_in["wo"],
        "gate_w": _w((lambda *s: torch.randn(*s, dtype=torch.bfloat16) * 0.05)(448) * 16.0),
    }

def reference(A_x, A_k_cache, A_v_cache, A_wq, A_wo, B_x, B_k_cache, B_v_cache, B_wq, B_wo, gate_w):
    def _A_ref(x, k_cache, v_cache, wq, wo):
        B, Sq, D = x.shape
        Hq, Dh = 16, 256
        Hkv = k_cache.shape[1]
        rep = Hq // Hkv
        q = (lambda x, *d: x.permute(*d))((x @ wq).reshape(B, Sq, Hq, Dh), 0, 2, 1, 3)
        k = (lambda x, n, axis: torch.repeat_interleave(x, n, dim=axis))(k_cache, rep, axis=1)
        v = (lambda x, n, axis: torch.repeat_interleave(x, n, dim=axis))(v_cache, rep, axis=1)
        scores = torch.einsum("bhqd,bhkd->bhqk", q, k) * (Dh ** -0.5)
        p = _softmax(scores, axis=-1)
        o = torch.einsum("bhqk,bhkd->bhqd", p, v)
        return (lambda x, *d: x.permute(*d))(o, 0, 2, 1, 3).reshape(B, Sq, Hq * Dh) @ wo

    def _B_ref(x, k_cache, v_cache, wq, wo):
        B, Sq, D = x.shape
        Hq, Dh = 16, 256
        Hkv = k_cache.shape[1]
        rep = Hq // Hkv
        q = (lambda x, *d: x.permute(*d))((x @ wq).reshape(B, Sq, Hq, Dh), 0, 2, 1, 3)
        k = (lambda x, n, axis: torch.repeat_interleave(x, n, dim=axis))(k_cache, rep, axis=1)
        v = (lambda x, n, axis: torch.repeat_interleave(x, n, dim=axis))(v_cache, rep, axis=1)
        scores = torch.einsum("bhqd,bhkd->bhqk", q, k) * (Dh ** -0.5)
        p = _softmax(scores, axis=-1)
        o = torch.einsum("bhqk,bhkd->bhqd", p, v)
        return (lambda x, *d: x.permute(*d))(o, 0, 2, 1, 3).reshape(B, Sq, Hq * Dh) @ wo

    x = A_x
    g = _sigmoid((x * gate_w).sum(-1, keepdims=True))
    a = _A_ref(x, A_k_cache, A_v_cache, A_wq, A_wo)
    b = _B_ref(x, B_k_cache, B_v_cache, B_wq, B_wo)
    return g * a + (1 - g) * b
```

```python
import sys, argparse

KNAME = "gated_mix__gqa_block_cached__gqa_block_cached__decode_kernel"
HEADER = open("gated_mix__gqa_block_cached__gqa_block_cached__decode.s.ref").read().split("; Override launch")[0]

QBUF_OFF = 0x0
POOL_OFF = 0x8000
H2_OFF   = 0x10000
H2_PSTRIDE = 160
H2_CSTRIDE = 16 * H2_PSTRIDE
H3_OFF   = 0x100000
DBG_OFF  = 0x200000
WS_BYTES = 0x800000
SENT = 0xFFFFFFFF

L_QP  = 0
L_QF  = 3584
L_ML  = L_QF + 2048
L_GATE = L_ML + 128
L_ACC = 6144
L_WO  = L_ACC + 16384
LDS_BYTES = L_WO + 32768

C_SCALE = 1.4426950408889634 / 16.0
import struct
def f2u(f): return struct.unpack("<I", struct.pack("<f", f))[0]

class G:
    def __init__(s): s.L = []
    def __call__(s, t): s.L.append("    " + t)
    def lab(s, t): s.L.append(t + ":")
    def c(s, t): s.L.append("    ; " + t)

def vr(a, n=4): return f"v[{a}:{a+n-1}]"
def sr(a, n=4): return f"s[{a}:{a+n-1}]"

def gen(dynamic=True, debug=False, stamps=False, nt="nt", maxspin=400000):
    A = G()
    sG, sJ, sB, sSP, sBR, sKVH, sW = 3, 4, 5, 6, 7, 8, 9
    sCur, sCur2, sNxt, sNxt2 = 10, 11, 12, 13
    sT0, sT1, sT2 = 14, 15, 88
    K_, V_, WQ_, WO_, WS_, X_, GW_, OUT_, DB_ = 44, 48, 52, 56, 60, 64, 68, 72, 76
    sSelLo, sSelHi, sC = 80, 81, 82
    sPool = 83
    sM2 = 84
    sA0, sA1 = 86, 87
    sSpin = 89
    sEx = 90
    sTs = 92
    sTnext = 100
    vLane, vR, vGq, vKoff, vVoff, vTick, vM, vLs, vMsk = 2, 3, 4, 5, 6, 7, 8, 9, 10
    vT = [11, 12, 13, 14, 15]
    RING = 16
    F = 80
    ACC = 112
    QB = 144
    D = 152
    S = 168
    P = 172
    AF = 176
    TT = 180
    PW = 196
    PX = 212
    PA = 220
    WR = 224 + 4
    WR = ACC

    def slot(i): return RING + 4 * i

    A.c("entry")
    A("s_cmp_ge_u32 s2, 256")
    A("s_cbranch_scc1 L_end")
    if stamps:
        A(f"s_memrealtime s[{sTs}:{sTs+1}]")
    A("s_load_dwordx16 s[16:31], s[0:1], 0")
    A("s_load_dwordx8 s[32:39], s[0:1], 64")
    A("s_load_dwordx4 s[40:43], s[0:1], 96")
    A("v_lshrrev_b32 v1, 6, v0")
    A(f"v_and_b32 v{vLane}, 63, v0")
    A(f"v_readfirstlane_b32 s{sW}, v1")
    A(f"s_lshr_b32 s{sG}, s2, 4")
    A(f"s_and_b32 s{sJ}, s2, 15")
    A(f"s_lshr_b32 s{sB}, s{sJ}, 3")
    A(f"s_and_b32 s{sSP}, s{sJ}, 7")
    A(f"s_lshr_b32 s{sBR}, s{sG}, 3")
    A(f"s_and_b32 s{sKVH}, s{sG}, 7")
    A(f"v_and_b32 v{vR}, 15, v{vLane}")
    A(f"v_lshrrev_b32 v{vGq}, 4, v{vLane}")
    A(f"v_lshrrev_b32 v11, 2, v{vR}")
    A(f"v_lshlrev_b32 v11, 9, v11")
    A(f"v_and_b32 v12, 3, v{vR}")
    A(f"v_lshlrev_b32 v12, 4, v12")
    A(f"v_lshlrev_b32 v13, 6, v{vGq}")
    A(f"v_add3_u32 v{vKoff}, v11, v12, v13")
    A(f"v_lshlrev_b32 v11, 9, v{vGq}")
    A(f"v_lshlrev_b32 v12, 4, v{vR}")
    A(f"v_add_u32 v{vVoff}, v11, v12")
    A(f"s_mov_b32 s{sSelLo}, 0x05040100")
    A(f"s_mov_b32 s{sSelHi}, 0x07060302")
    A(f"s_mov_b32 s{sC}, {f2u(C_SCALE):#x}")
    A(f"s_mov_b32 s{sM2}, 0x00030003")
    A(f"s_mov_b32 s{sM2+1}, 0x00030003")
    A(f"v_cndmask_b32 v{vMsk}, 0, -1, s[{sM2}:{sM2+1}]")
    A(f"s_lshl_b32 s{sT0}, s{sSP}, 3")
    A(f"s_add_u32 s{sT0}, s{sT0}, s{sW}")
    A(f"s_lshl_b32 s{sCur}, s{sT0}, 13")
    A(f"s_add_u32 s{sCur2}, s{sCur}, 4096")
    A(f"s_sub_u32 s{sT1}, s{sT0}, 64")
    A(f"v_mov_b32 v{vTick}, s{sT1}")
    A(f"s_mov_b32 s{sTnext}, s{sT0}")
    A(f"s_lshl_b32 s{sPool}, s{sG}, 1")
    A(f"s_add_u32 s{sPool}, s{sPool}, s{sB}")
    A(f"s_lshl_b32 s{sPool}, s{sPool}, 8")
    A(f"s_add_u32 s{sPool}, s{sPool}, {POOL_OFF}")
    A(f"s_lshl_b32 s{sT1}, s{sB}, 3")
    A(f"s_add_u32 s{sT1}, s{sT1}, s{sKVH}")
    A(f"s_lshl_b32 s{sT1}, s{sT1}, 22")
    A("s_waitcnt lgkmcnt(0)")
    A(f"s_cmp_eq_u32 s{sBR}, 0")
    for (srd, a, b_) in ((K_, 18, 28), (V_, 20, 30), (WQ_, 22, 32), (WO_, 24, 34)):
        A(f"s_cselect_b32 s{srd}, s{a}, s{b_}")
        A(f"s_cselect_b32 s{srd+1}, s{a+1}, s{b_+1}")
    for srd in (K_, V_):
        A(f"s_add_u32 s{srd}, s{srd}, s{sT1}")
        A(f"s_addc_u32 s{srd+1}, s{srd+1}, 0")
        A(f"s_mov_b32 s{srd+2}, 0x400000")
        A(f"s_mov_b32 s{srd+3}, 0x20000")
    for srd in (WQ_, WO_):
        A(f"s_mov_b32 s{srd+2}, {448*4096*2}")
        A(f"s_mov_b32 s{srd+3}, 0x20000")
    for (srd, a, n) in ((WS_, 42, WS_BYTES), (X_, 16, 1792), (GW_, 36, 896), (OUT_, 38, 1792), (DB_, 40, 256)):
        A(f"s_mov_b32 s{srd}, s{a}")
        A(f"s_mov_b32 s{srd+1}, s{a+1}")
        A(f"s_mov_b32 s{srd+2}, {n}")
        A(f"s_mov_b32 s{srd+3}, 0x20000")
    A(f"s_cmp_eq_u32 s{sW}, 0")
    A("s_cbranch_scc1 L_helper")

    def tile_loads(cur, cur2):
        for j in range(8):
            g_, hf = j >> 1, j & 1
            so = cur if g_ < 2 else cur2
            A(f"buffer_load_dwordx4 {vr(slot(j))}, v{vKoff}, {sr(K_)}, s{so} offen offset:{(g_&1)*2048+hf*256} {nt}")
        for j in range(8):
            hf, jp = j >> 2, j & 3
            so = cur if jp < 2 else cur2
            A(f"buffer_load_dwordx4 {vr(slot(8+j))}, v{vVoff}, {sr(V_)}, s{so} offen offset:{(jp&1)*2048+hf*256} {nt}")

    A.c("---- waves 1..7: q-proj partial")
    A(f"s_sub_u32 s{sT0}, s{sW}, 1")
    A(f"v_lshrrev_b32 v11, 3, v{vLane}")
    A(f"v_and_b32 v12, 7, v{vLane}")
    A(f"s_lshl_b32 s{sT1}, s{sT0}, 6")
    A(f"v_lshlrev_b32 v11, 3, v11")
    A(f"v_add_u32 v11, s{sT1}, v11")
    A(f"v_lshlrev_b32 v13, 1, v11")
    A(f"v_lshlrev_b32 v11, 13, v11")
    A(f"v_lshlrev_b32 v12, 3, v12")
    A(f"v_add_u32 v14, v11, v12")
    A(f"s_lshl_b32 s{sT1}, s{sKVH}, 10")
    A(f"s_lshl_b32 s{sT2}, s{sJ}, 6")
    A(f"s_add_u32 s{sT1}, s{sT1}, s{sT2}")
    A(f"buffer_load_dwordx4 {vr(PX)}, v13, {sr(X_)}, 0 offen")
    A(f"buffer_load_dwordx4 {vr(PX+4)}, v13, {sr(X_)}, 0 offen offset:896")
    for jj in range(8):
        A(f"buffer_load_dwordx2 {vr(PW+2*jj,2)}, v14, {sr(WQ_)}, s{sT1} offen {nt}")
        if jj < 7: A(f"s_add_u32 s{sT1}, s{sT1}, 8192")
    tile_loads(sCur, sCur2)
    A(f"s_cmp_lt_u32 s{sW}, 4")
    A("s_cbranch_scc1 L_q_nowo")
    A(f"s_lshl_b32 s{sT1}, s{sKVH}, 9")
    A(f"s_lshl_b32 s{sT2}, s{sJ}, 5")
    A(f"s_add_u32 s{sT1}, s{sT1}, s{sT2}")
    A(f"s_mul_i32 s{sT1}, s{sT1}, 896")
    A(f"s_sub_u32 s{sT2}, s{sW}, 4")
    A(f"s_lshl_b32 s{sT2}, s{sT2}, 8")
    A(f"s_add_u32 s{sT1}, s{sT1}, s{sT2}")
    A(f"v_mul_u32_u24 v11, {8*896}, v{vGq}")
    A(f"v_lshlrev_b32 v12, 4, v{vR}")
    A(f"v_add_u32 v15, v11, v12")
    for jj in range(8):
        A(f"buffer_load_dwordx4 {vr(WR+4*jj)}, v15, {sr(WO_)}, s{sT1} offen {nt}")
        if jj < 7: A(f"s_add_u32 s{sT1}, s{sT1}, 896")
    A("s_waitcnt vmcnt(24)")
    A("s_branch L_q_go")
    A.lab("L_q_nowo")
    A("s_waitcnt vmcnt(16)")
    A.lab("L_q_go")
    for k in range(8): A(f"v_mov_b32 v{PA+k}, 0")
    for a in range(4):
        for d in range(2):
            A(f"v_perm_b32 v{TT+2*d}, v{PW+4*a+2+d}, v{PW+4*a+d}, s{sSelLo}")
            A(f"v_perm_b32 v{TT+2*d+1}, v{PW+4*a+2+d}, v{PW+4*a+d}, s{sSelHi}")
        for b_ in range(2):
            for cc in range(4):
                A(f"v_dot2_f32_bf16 v{PA+4*b_+cc}, v{TT+cc}, v{PX+4*b_+a}, v{PA+4*b_+cc}")
    A("s_nop 3")
    for k in range(8):
        A(f"v_add_f32_dpp v{PA+k}, v{PA+k}, v{PA+k} row_ror:8 row_mask:0xf bank_mask:0xf")
    A("s_nop 1")
    for k in range(0, 8, 2):
        A(f"v_permlane16_swap_b32 v{PA+k}, v{PA+k+1}")
    A("s_nop 1")
    for k in range(0, 8, 2):
        A(f"v_add_f32 v{PA+k}, v{PA+k}, v{PA+k+1}")
    A("s_nop 1")
    A(f"v_permlane32_swap_b32 v{PA+0}, v{PA+2}")
    A(f"v_permlane32_swap_b32 v{PA+4}, v{PA+6}")
    A("s_nop 1")
    A(f"v_add_f32 v{PA+0}, v{PA+0}, v{PA+2}")
    A(f"v_add_f32 v{PA+4}, v{PA+4}, v{PA+6}")
    A(f"s_lshl_b32 s{sT1}, s{sT0}, 9")
    A(f"v_lshlrev_b32 v11, 2, v{vLane}")
    A(f"v_add_u32 v11, s{sT1}, v11")
    A(f"ds_write_b32 v11, v{PA+0} offset:{L_QP}")
    A(f"ds_write_b32 v11, v{PA+4} offset:{L_QP+256}")
    A("s_waitcnt lgkmcnt(0)")
    A("s_barrier")
    A(f"s_cmp_lt_u32 s{sW}, 4")
    A("s_cbranch_scc1 L_q_wait")
    A("s_waitcnt vmcnt(0)")
    for i in range(4):
        for d in range(4):
            A(f"v_perm_b32 v{F+4*(2*d)+i}, v{WR+4*(2*i+1)+d}, v{WR+4*(2*i)+d}, s{sSelLo}")
            A(f"v_perm_b32 v{F+4*(2*d+1)+i}, v{WR+4*(2*i+1)+d}, v{WR+4*(2*i)+d}, s{sSelHi}")
    A(f"s_sub_u32 s{sT2}, s{sW}, 4")
    A(f"s_lshl_b32 s{sT2}, s{sT2}, 13")
    A(f"v_lshlrev_b32 v11, 4, v{vLane}")
    A(f"v_add_u32 v11, s{sT2}, v11")
    for e in range(8):
        A(f"ds_write_b128 v11, {vr(F+4*e)} offset:{L_WO+1024*e}")
    A.lab("L_q_wait")
    A("s_waitcnt lgkmcnt(0)")
    A("s_barrier")
    A("s_branch L_main")

    A.lab("L_helper")
    A.c("---- wave 0: clears, gate, q reduce/publish/poll")
    A(f"v_mov_b32 v{F+0}, -1"); A(f"v_mov_b32 v{F+1}, -1"); A(f"v_mov_b32 v{F+2}, -1"); A(f"v_mov_b32 v{F+3}, -1")
    A(f"v_lshlrev_b32 v11, 4, v{vLane}")
    A(f"s_mul_i32 s{sT1}, s2, {H2_CSTRIDE}")
    A(f"s_add_u32 s{sT1}, s{sT1}, {H2_OFF}")
    A(f"buffer_store_dwordx4 {vr(F)}, v11, {sr(WS_)}, s{sT1} offen sc1")
    A(f"buffer_store_dwordx4 {vr(F)}, v11, {sr(WS_)}, s{sT1} offen offset:1024 sc1")
    A(f"v_cmp_gt_u32 vcc, 32, v{vLane}")
    A(f"s_and_saveexec_b64 s[{sEx}:{sEx+1}], vcc")
    A(f"buffer_store_dwordx4 {vr(F)}, v11, {sr(WS_)}, s{sT1} offen offset:2048 sc1")
    A(f"s_mov_b64 exec, s[{sEx}:{sEx+1}]")
    A(f"s_lshl_b32 s{sT1}, s2, 12")
    A(f"s_add_u32 s{sT1}, s{sT1}, {H3_OFF}")
    for k in range(4):
        A(f"buffer_store_dwordx4 {vr(F)}, v11, {sr(WS_)}, s{sT1} offen offset:{1024*k} sc1")
    A(f"s_cmp_lg_u32 s{sSP}, 0")
    A("s_cbranch_scc1 L_h_nopool")
    A("v_mov_b32 v12, 0")
    A("s_mov_b64 exec, 1")
    A(f"buffer_store_dword v12, off, {sr(WS_)}, s{sPool} sc1")
    A("s_mov_b64 exec, -1")
    A.lab("L_h_nopool")
    A(f"buffer_load_dwordx4 {vr(PX)}, v11, {sr(X_)}, 0 offen")
    A(f"buffer_load_dwordx4 {vr(PX+4)}, v11, {sr(X_)}, 0 offen offset:896")
    A(f"buffer_load_dwordx4 {vr(PW)}, v11, {sr(GW_)}, 0 offen")
    A("s_waitcnt vmcnt(0)")
    A("v_mov_b32 v12, 0"); A("v_mov_b32 v13, 0")
    for d in range(4):
        A(f"v_dot2_f32_bf16 v12, v{PX+d}, v{PW+d}, v12")
        A(f"v_dot2_f32_bf16 v13, v{PX+4+d}, v{PW+d}, v13")
    A("s_nop 3")
    def allreduce_add(regs, tmp):
        for ctl in ("quad_perm:[1,0,3,2]", "quad_perm:[2,3,0,1]", "row_half_mirror", "row_mirror"):
            for r_ in regs:
                A(f"v_add_f32_dpp v{r_}, v{r_}, v{r_} {ctl} row_mask:0xf bank_mask:0xf")
            A("s_nop 1")
        for sw in ("v_permlane16_swap_b32", "v_permlane32_swap_b32"):
            for r_, t_ in zip(regs, tmp): A(f"v_mov_b32 v{t_}, v{r_}")
            A("s_nop 1")
            for r_, t_ in zip(regs, tmp): A(f"{sw} v{r_}, v{t_}")
            A("s_nop 1")
            for r_, t_ in zip(regs, tmp): A(f"v_add_f32 v{r_}, v{r_}, v{t_}")
            A("s_nop 1")
    allreduce_add([12, 13], [14, 15])
    A(f"s_mov_b32 s{sT1}, {f2u(-1.4426950408889634):#x}")
    A(f"s_mov_b32 s{sT2}, {f2u(1.4426950408889634):#x}")
    A(f"s_cmp_eq_u32 s{sBR}, 0")
    A(f"s_cselect_b32 s{sT1}, s{sT1}, s{sT2}")
    A(f"v_mul_f32 v12, s{sT1}, v12"); A(f"v_mul_f32 v13, s{sT1}, v13")
    A("v_exp_f32 v12, v12"); A("v_exp_f32 v13, v13")
    A("s_nop 0")
    A("v_add_f32 v12, 1.0, v12"); A("v_add_f32 v13, 1.0, v13")
    A("v_rcp_f32 v12, v12"); A("v_rcp_f32 v13, v13")
    A("s_nop 0")
    A(f"v_mov_b32 v14, {L_GATE}")
    A("ds_write_b64 v14, v[12:13]")
    A("s_waitcnt lgkmcnt(0)")
    A("s_barrier")
    A(f"v_lshrrev_b32 v11, 5, v{vLane}")
    A(f"v_lshlrev_b32 v11, 8, v11")
    A(f"v_and_b32 v12, 3, v{vLane}")
    A(f"v_lshlrev_b32 v12, 6, v12")
    A(f"v_bfe_u32 v13, v{vLane}, 2, 3")
    A(f"v_lshlrev_b32 v13, 2, v13")
    A(f"v_add3_u32 v11, v11, v12, v13")
    for k in range(7):
        A(f"ds_read_b32 v{TT+k}, v11 offset:{L_QP+512*k}")
    A("s_waitcnt lgkmcnt(0)")
    for k in range(1, 7):
        A(f"v_add_f32 v{TT}, v{TT}, v{TT+k}")
    A("s_nop 1")
    A(f"v_mov_b32_dpp v{TT+1}, v{TT} quad_perm:[1,1,3,3] row_mask:0xf bank_mask:0xf")
    A("s_nop 0")
    A(f"v_cvt_pk_bf16_f32 v{TT+2}, v{TT}, v{TT+1}")
    A(f"s_lshl_b32 s{sT1}, s{sG}, 11")
    A(f"s_lshl_b32 s{sT2}, s{sJ}, 6")
    A(f"s_add_u32 s{sT1}, s{sT1}, s{sT2}")
    A(f"v_lshrrev_b32 v11, 5, v{vLane}")
    A(f"v_lshlrev_b32 v11, 10, v11")
    A(f"v_and_b32 v12, 31, v{vLane}")
    A(f"v_lshlrev_b32 v12, 1, v12")
    A(f"v_add_u32 v11, v11, v12")
    A(f"s_mov_b32 s{sEx}, 0x55555555"); A(f"s_mov_b32 s{sEx+1}, 0x55555555")
    A(f"s_mov_b64 exec, s[{sEx}:{sEx+1}]")
    A(f"buffer_store_dword v{TT+2}, v11, {sr(WS_)}, s{sT1} offen offset:{QBUF_OFF} sc1")
    A("s_mov_b64 exec, -1")
    A("s_waitcnt vmcnt(0)")
    A("v_mov_b32 v12, 1")
    A(f"s_lshl_b32 s{sT1}, s{sG}, 2")
    A("s_mov_b64 exec, 1")
    A(f"buffer_atomic_add v12, off, {sr(DB_)}, s{sT1}")
    A("s_mov_b64 exec, -1")
    A(f"s_mov_b32 s{sSpin}, 0")
    A.lab("L_qpoll")
    A(f"buffer_load_dword v12, off, {sr(DB_)}, s{sT1} sc1")
    A("s_waitcnt vmcnt(0)")
    A(f"v_readfirstlane_b32 s{sT2}, v12")
    A(f"s_add_u32 s{sSpin}, s{sSpin}, 1")
    A(f"s_cmp_gt_u32 s{sSpin}, {maxspin}")
    A("s_cbranch_scc1 L_qgot")
    A(f"s_cmp_lt_u32 s{sT2}, 16")
    A("s_cbranch_scc1 L_qpoll")
    A.lab("L_qgot")
    A(f"v_and_b32 v11, 1, v{vR}")
    A(f"v_lshlrev_b32 v11, 9, v11")
    A(f"v_bfe_u32 v12, v{vR}, 1, 2")
    A(f"v_lshlrev_b32 v12, 4, v12")
    A(f"v_lshlrev_b32 v13, 6, v{vGq}")
    A(f"v_add3_u32 v11, v11, v12, v13")
    A(f"s_lshl_b32 s{sT1}, s{sG}, 11")
    A(f"s_lshl_b32 s{sT2}, s{sB}, 10")
    A(f"s_add_u32 s{sT1}, s{sT1}, s{sT2}")
    A(f"buffer_load_dwordx4 {vr(QB)}, v11, {sr(WS_)}, s{sT1} offen offset:{QBUF_OFF} sc1")
    A(f"buffer_load_dwordx4 {vr(QB+4)}, v11, {sr(WS_)}, s{sT1} offen offset:{QBUF_OFF+256} sc1")
    A(f"v_lshlrev_b32 v11, 4, v{vLane}")
    A("s_waitcnt vmcnt(0)")
    A(f"ds_write_b128 v11, {vr(QB)} offset:{L_QF}")
    A(f"ds_write_b128 v11, {vr(QB+4)} offset:{L_QF+1024}")
    tile_loads(sCur, sCur2)
    A("s_waitcnt lgkmcnt(0)")
    A("s_barrier")

    A.lab("L_main")
    A(f"v_lshlrev_b32 v11, 4, v{vLane}")
    A(f"ds_read_b128 {vr(QB)}, v11 offset:{L_QF}")
    A(f"ds_read_b128 {vr(QB+4)}, v11 offset:{L_QF+1024}")
    for k in range(32): A(f"v_mov_b32 v{ACC+k}, 0")
    A(f"v_mov_b32 v{vM}, 0xff7fffff")
    A(f"v_mov_b32 v{vLs}, 0")
    A("s_waitcnt lgkmcnt(0)")
    if stamps:
        A(f"s_memrealtime s[{sTs+2}:{sTs+3}]")
    a1 = 1 if dynamic else 0
    A.lab("L_loop")
    A("s_waitcnt vmcnt(15)")
    if dynamic:
        A(f"v_readfirstlane_b32 s{sTnext}, v{vTick}")
        A(f"v_mov_b32 v{vTick}, 1")
        A(f"s_add_u32 s{sTnext}, s{sTnext}, 128")
        A("s_mov_b64 exec, 1")
        A(f"buffer_atomic_add v{vTick}, off, {sr(WS_)}, s{sPool} sc0")
        A("s_mov_b64 exec, -1")
    else:
        A(f"s_add_u32 s{sTnext}, s{sTnext}, 64")
    A(f"s_lshl_b32 s{sNxt}, s{sTnext}, 13")
    A(f"s_add_u32 s{sNxt2}, s{sNxt}, 4096")
    for j in range(8):
        g_, hf = j >> 1, j & 1
        if j: A(f"s_waitcnt vmcnt({15+a1})")
        c_ = "0" if hf == 0 else vr(D+4*g_)
        A(f"v_mfma_f32_16x16x32_bf16 {vr(D+4*g_)}, {vr(slot(j))}, {vr(QB+4*hf)}, {c_}")
        so = sNxt if g_ < 2 else sNxt2
        A(f"buffer_load_dwordx4 {vr(slot(j))}, v{vKoff}, {sr(K_)}, s{so} offen offset:{(g_&1)*2048+hf*256} {nt}")
    for g_ in range(3):
        A(f"v_add_f32_dpp v{TT+2*g_}, v{D+4*g_+1}, v{D+4*g_+0} row_shl:2 row_mask:0xf bank_mask:0xf bound_ctrl:0")
        A(f"v_add_f32_dpp v{TT+2*g_+1}, v{D+4*g_+3}, v{D+4*g_+2} row_shl:2 row_mask:0xf bank_mask:0xf bound_ctrl:0")
    A("s_nop 3")
    A(f"v_add_f32_dpp v{TT+6}, v{D+13}, v{D+12} row_shl:2 row_mask:0xf bank_mask:0xf bound_ctrl:0")
    A(f"v_add_f32_dpp v{TT+7}, v{D+15}, v{D+14} row_shl:2 row_mask:0xf bank_mask:0xf bound_ctrl:0")
    for g_ in range(3):
        A(f"v_add_f32_dpp v{S+g_}, v{TT+2*g_+1}, v{TT+2*g_} row_shl:4 row_mask:0xf bank_mask:0xf bound_ctrl:0")
    A(f"v_add_f32_dpp v{S+3}, v{TT+7}, v{TT+6} row_shl:4 row_mask:0xf bank_mask:0xf bound_ctrl:0")
    A(f"v_max3_f32 v11, v{S}, v{S+1}, v{S+2}")
    A(f"v_max_f32 v11, v11, v{S+3}")
    A("v_mov_b32 v12, v11")
    A("s_nop 1")
    A("v_permlane32_swap_b32 v11, v12")
    A("s_nop 1")
    A("v_max_f32 v11, v11, v12")
    A("v_mov_b32 v12, v11")
    A("s_nop 1")
    A("v_permlane16_swap_b32 v11, v12")
    A("s_nop 1")
    A("v_max3_f32 v11, v11, v12, v%d" % vM)
    A(f"v_cmp_gt_f32 vcc, v11, v{vM}")
    A(f"s_and_b64 vcc, vcc, s[{sM2}:{sM2+1}]")
    A("s_cbranch_scc0 L_norescale")
    A(f"v_sub_f32 v12, v{vM}, v11")
    A(f"v_mul_f32 v12, s{sC}, v12")
    A("v_exp_f32 v12, v12")
    A("s_nop 1")
    A(f"v_readlane_b32 s{sA0}, v12, 0")
    A(f"v_readlane_b32 s{sA1}, v12, 1")
    A(f"v_mul_f32 v{vLs}, v{vLs}, v12")
    A("s_nop 1")
    for e in range(8):
        for i in range(4):
            A(f"v_mul_f32 v{ACC+4*e+i}, s{sA0 if (i&1)==0 else sA1}, v{ACC+4*e+i}")
    A.lab("L_norescale")
    A(f"v_mov_b32 v{vM}, v11")
    A(f"v_mul_f32 v12, s{sC}, v11")
    for g_ in range(4):
        A(f"v_fma_f32 v{P+g_}, v{S+g_}, s{sC}, -v12")
    for g_ in range(4):
        A(f"v_exp_f32 v{P+g_}, v{P+g_}")
    A("s_nop 0")
    A(f"v_cvt_pk_bf16_f32 v{AF}, v{P}, v{P+1}")
    A(f"v_cvt_pk_bf16_f32 v{AF+1}, v{P+2}, v{P+3}")
    A(f"v_add_f32 v12, v{P}, v{P+1}")
    A(f"v_add_f32 v13, v{P+2}, v{P+3}")
    A(f"v_and_b32 v{AF}, v{AF}, v{vMsk}")
    A(f"v_and_b32 v{AF+1}, v{AF+1}, v{vMsk}")
    A("v_add_f32 v12, v12, v13")
    A(f"v_add_f32 v{vLs}, v{vLs}, v12")
    A(f"v_mov_b32_dpp v{AF+2}, v{AF} row_shr:2 row_mask:0xf bank_mask:0xf bound_ctrl:0")
    A(f"v_mov_b32_dpp v{AF+3}, v{AF+1} row_shr:2 row_mask:0xf bank_mask:0xf bound_ctrl:0")
    for i in range(4):
        A(f"s_waitcnt vmcnt({14+a1})")
        a_, b_ = slot(8+2*i), slot(8+2*i+1)
        for d in range(4):
            A(f"v_perm_b32 v{F+4*(2*d)+i}, v{b_+d}, v{a_+d}, s{sSelLo}")
            A(f"v_perm_b32 v{F+4*(2*d+1)+i}, v{b_+d}, v{a_+d}, s{sSelHi}")
        for j in (2*i, 2*i+1):
            hf, jp = j >> 2, j & 3
            so = sNxt if jp < 2 else sNxt2
            A(f"buffer_load_dwordx4 {vr(slot(8+j))}, v{vVoff}, {sr(V_)}, s{so} offen offset:{(jp&1)*2048+hf*256} {nt}")
    for e in range(8):
        A(f"v_mfma_f32_16x16x32_bf16 {vr(ACC+4*e)}, {vr(AF)}, {vr(F+4*e)}, {vr(ACC+4*e)}")
    A(f"s_cmp_lt_u32 s{sTnext}, 512")
    A("s_cbranch_scc1 L_loop")
    A.c("---- wave finish")
    if stamps:
        A(f"s_memrealtime s[{sTs+4}:{sTs+5}]")
    A(f"v_mov_b32 v12, v{vLs}")
    A("s_nop 1")
    A(f"v_permlane32_swap_b32 v{vLs}, v12")
    A("s_nop 1")
    A(f"v_add_f32 v{vLs}, v{vLs}, v12")
    A(f"v_mov_b32 v12, v{vLs}")
    A("s_nop 1")
    A(f"v_permlane16_swap_b32 v{vLs}, v12")
    A("s_nop 1")
    A(f"v_add_f32 v{vLs}, v{vLs}, v12")
    A(f"s_lshl_b32 s{sT1}, s{sW}, 4")
    A(f"v_lshlrev_b32 v11, 3, v{vLane}")
    A(f"v_add_u32 v11, s{sT1}, v11")
    A(f"s_lshl_b32 s{sT1}, s{sW}, 11")
    A(f"v_lshlrev_b32 v12, 7, v{vLane}")
    A(f"v_add_u32 v12, s{sT1}, v12")
    A("s_mov_b64 exec, 3")
    A(f"ds_write_b64 v11, v[{vM}:{vLs}] offset:{L_ML}")
    A("s_mov_b64 exec, 0xffff")
    for e in range(8):
        A(f"ds_write_b128 v12, {vr(ACC+4*e)} offset:{L_ACC+16*e}")
    A("s_mov_b64 exec, -1")
    A("s_waitcnt vmcnt(0) lgkmcnt(0)")
    A("s_barrier")
    A(f"s_cmp_lt_u32 s{sW}, 4")
    A("s_cbranch_scc1 L_h2")
    A(f"s_cmp_eq_u32 s{sW}, 6")
    A("s_cbranch_scc1 L_h3")
    A(f"s_cmp_eq_u32 s{sW}, 7")
    A("s_cbranch_scc1 L_end")
    A.c("---- merge: waves 4,5")
    A(f"v_and_b32 v11, 7, v{vLane}")
    A(f"v_lshlrev_b32 v11, 4, v11")
    A(f"v_bfe_u32 v12, v{vLane}, 3, 1")
    A(f"v_lshlrev_b32 v12, 3, v12")
    A("v_add_u32 v11, v11, v12")
    A(f"ds_read_b64 v[14:15], v11 offset:{L_ML}")
    A(f"s_sub_u32 s{sT1}, s{sW}, 4")
    A(f"s_lshl_b32 s{sT1}, s{sT1}, 10")
    A(f"v_lshlrev_b32 v13, 4, v{vLane}")
    A(f"v_add_u32 v13, s{sT1}, v13")
    for w in range(8):
        A(f"ds_read_b128 {vr(RING+4*w)}, v13 offset:{L_ACC+2048*w}")
    A("s_waitcnt lgkmcnt(8)")
    A("v_mov_b32 v11, v14")
    A("s_nop 1")
    for ctl in ("quad_perm:[1,0,3,2]", "quad_perm:[2,3,0,1]", "row_half_mirror"):
        A(f"v_max_f32_dpp v11, v11, v11 {ctl} row_mask:0xf bank_mask:0xf")
        A("s_nop 1")
    A("v_sub_f32 v12, v14, v11")
    A(f"v_mul_f32 v12, s{sC}, v12")
    A("v_exp_f32 v12, v12")
    A("s_nop 0")
    A("v_mul_f32 v15, v15, v12")
    A("s_nop 1")
    for ctl in ("quad_perm:[1,0,3,2]", "quad_perm:[2,3,0,1]", "row_half_mirror"):
        A(f"v_add_f32_dpp v15, v15, v15 {ctl} row_mask:0xf bank_mask:0xf")
        A("s_nop 1")
    for k in range(16):
        A(f"v_readlane_b32 s{16+k}, v12, {k}")
    A("s_waitcnt lgkmcnt(0)")
    A("s_nop 1")
    for i in range(4):
        A(f"v_mul_f32 v{TT+i}, s{16+8*(i&1)}, v{RING+i}")
    for w in range(1, 8):
        for i in range(4):
            A(f"v_fma_f32 v{TT+i}, v{RING+4*w+i}, s{16+8*(i&1)+w}, v{TT+i}")
    A(f"v_lshlrev_b32 v13, 2, v{vLane}")
    A(f"s_mov_b32 s{sSpin}, 0")
    A.lab("L_rdy")
    A("s_mov_b64 exec, 0xffff")
    A(f"buffer_load_dword v16, v13, {sr(DB_)}, 0 offen sc1")
    A("s_waitcnt vmcnt(0)")
    A("v_cmp_gt_u32 vcc, 16, v16")
    A("s_mov_b64 exec, -1")
    A(f"s_add_u32 s{sSpin}, s{sSpin}, 1")
    A(f"s_cmp_gt_u32 s{sSpin}, {maxspin}")
    A("s_cbranch_scc1 L_rdy_done")
    A("s_cbranch_vccnz L_rdy")
    A.lab("L_rdy_done")
    A(f"s_lshl_b32 s{sT1}, s{sG}, 4")
    A(f"s_sub_u32 s{sT2}, s{sW}, 4")
    A(f"s_lshl_b32 s{sT2}, s{sT2}, 1")
    A(f"s_add_u32 s{sT1}, s{sT1}, s{sT2}")
    A(f"s_mul_i32 s{sT1}, s{sT1}, {H2_CSTRIDE}")
    A(f"s_mul_i32 s{sT2}, s{sJ}, {H2_PSTRIDE}")
    A(f"s_add_u32 s{sT1}, s{sT1}, s{sT2}")
    A(f"s_add_u32 s{sT1}, s{sT1}, {H2_OFF}")
    A(f"v_lshrrev_b32 v13, 5, v{vLane}")
    A(f"v_mul_u32_u24 v13, {H2_CSTRIDE}, v13")
    A(f"v_and_b32 v16, 31, v{vLane}")
    A(f"v_lshlrev_b32 v16, 2, v16")
    A("v_add_u32 v13, v13, v16")
    for i in range(4):
        half, h = i >> 1, i & 1
        A(f"s_add_u32 s{sT2}, s{sT1}, {(h*8+half*4)*H2_CSTRIDE}")
        A(f"buffer_store_dword v{TT+i}, v13, {sr(WS_)}, s{sT2} offen sc1")
    A(f"s_cmp_lg_u32 s{sW}, 4")
    A("s_cbranch_scc1 L_end")
    A("v_mov_b32 v14, v11")
    A(f"s_lshl_b32 s{sT1}, s{sG}, 4")
    A(f"s_mul_i32 s{sT1}, s{sT1}, {H2_CSTRIDE}")
    A(f"s_mul_i32 s{sT2}, s{sJ}, {H2_PSTRIDE}")
    A(f"s_add_u32 s{sT1}, s{sT1}, s{sT2}")
    A(f"s_add_u32 s{sT1}, s{sT1}, {H2_OFF+128}")
    A(f"v_mul_u32_u24 v13, {H2_CSTRIDE}, v{vLane}")
    A("s_mov_b64 exec, 0xffff")
    A(f"buffer_store_dwordx2 v[14:15], v13, {sr(WS_)}, s{sT1} offen sc1")
    A("s_endpgm")
    A.lab("L_h2")
    A.c("---- H2 consume: waves 0..3, tau = w")
    A(f"s_lshl_b32 s{sT1}, s{sW}, 13")
    A(f"v_lshlrev_b32 v11, 4, v{vLane}")
    A(f"v_add_u32 v11, s{sT1}, v11")
    for e in range(8):
        A(f"ds_read_b128 {vr(RING+4*e)}, v11 offset:{L_WO+1024*e}")
    A(f"v_mov_b32 v12, {L_GATE}")
    A(f"ds_read_b64 v[{TT+14}:{TT+15}], v12")
    A(f"s_mul_i32 s{sT1}, s2, {H2_CSTRIDE}")
    A(f"s_add_u32 s{sT1}, s{sT1}, {H2_OFF}")
    A(f"v_mul_u32_u24 v11, {H2_PSTRIDE}, v{vR}")
    A(f"v_lshlrev_b32 v12, 5, v{vGq}")
    A("v_add_u32 v12, v11, v12")
    A(f"s_mov_b32 s{sSpin}, 0")
    A.lab("L_h2poll")
    A(f"buffer_load_dwordx4 {vr(F)}, v12, {sr(WS_)}, s{sT1} offen sc1")
    A(f"buffer_load_dwordx4 {vr(F+4)}, v12, {sr(WS_)}, s{sT1} offen offset:16 sc1")
    A(f"buffer_load_dwordx2 {vr(F+8,2)}, v11, {sr(WS_)}, s{sT1} offen offset:128 sc1")
    A("s_waitcnt vmcnt(0)")
    A(f"v_max3_u32 v13, v{F}, v{F+1}, v{F+2}")
    A(f"v_max3_u32 v14, v{F+3}, v{F+4}, v{F+5}")
    A(f"v_max3_u32 v15, v{F+6}, v{F+7}, v{F+8}")
    A(f"v_max3_u32 v13, v13, v14, v15")
    A(f"v_max_u32 v13, v13, v{F+9}")
    A("v_cmp_eq_u32 vcc, -1, v13")
    A(f"s_add_u32 s{sSpin}, s{sSpin}, 1")
    A(f"s_cmp_gt_u32 s{sSpin}, {maxspin}")
    A("s_cbranch_scc1 L_h2got")
    A("s_cbranch_vccnz L_h2poll")
    A.lab("L_h2got")
    A(f"v_mov_b32 v13, v{F+8}")
    A("s_nop 1")
    for ctl in ("quad_perm:[1,0,3,2]", "quad_perm:[2,3,0,1]", "row_half_mirror"):
        A(f"v_max_f32_dpp v13, v13, v13 {ctl} row_mask:0xf bank_mask:0xf")
        A("s_nop 1")
    A(f"v_sub_f32 v13, v{F+8}, v13")
    A(f"v_mul_f32 v13, s{sC}, v13")
    A("v_exp_f32 v13, v13")
    A("s_nop 0")
    A(f"v_mul_f32 v14, v13, v{F+9}")
    for k in range(8):
        A(f"v_mul_f32 v{F+k}, v13, v{F+k}")
    for ctl in ("quad_perm:[1,0,3,2]", "quad_perm:[2,3,0,1]", "row_half_mirror"):
        A(f"v_add_f32_dpp v14, v14, v14 {ctl} row_mask:0xf bank_mask:0xf")
        for k in range(8):
            A(f"v_add_f32_dpp v{F+k}, v{F+k}, v{F+k} {ctl} row_mask:0xf bank_mask:0xf")
    A("v_rcp_f32 v14, v14")
    A(f"v_cmp_gt_u32 vcc, 8, v{vR}")
    A("s_waitcnt lgkmcnt(0)")
    A("s_nop 1")
    A(f"v_cndmask_b32 v15, v{TT+15}, v{TT+14}, vcc")
    A("v_mul_f32 v14, v14, v15")
    for k in range(8):
        A(f"v_mul_f32 v{F+k}, v14, v{F+k}")
    for i in range(4):
        A(f"v_cvt_pk_bf16_f32 v{AF+i}, v{F+2*i}, v{F+2*i+1}")
    A("s_nop 1")
    for e in range(8):
        A(f"v_mfma_f32_16x16x32_bf16 {vr(ACC+4*e)}, {vr(AF)}, {vr(RING+4*e)}, 0")
    A(f"v_lshrrev_b32 v11, 1, v{vGq}")
    A(f"v_mul_u32_u24 v11, 112, v11")
    A(f"v_and_b32 v12, 1, v{vGq}")
    A(f"v_lshlrev_b32 v13, 1, v{vR}")
    A("v_add3_u32 v11, v11, v12, v13")
    A(f"s_lshl_b32 s{sT1}, s{sW}, 5")
    A(f"v_add_u32 v11, s{sT1}, v11")
    A("v_lshlrev_b32 v11, 12, v11")
    A(f"s_lshl_b32 s{sT1}, s2, 4")
    A(f"s_add_u32 s{sT1}, s{sT1}, {H3_OFF}")
    A(f"v_cmp_eq_u32 vcc, 1, v12")
    A(f"s_lshl_b32 s{sT2}, s{sW}, 4")
    A(f"v_add_u32 v13, s{sT2}, v{vR}")
    A(f"v_cmp_gt_u32 s[{sEx}:{sEx+1}], 56, v13")
    A("s_nop 4")
    for k in range(4):
        A(f"v_cndmask_b32 v{F+k}, v{ACC+4*k}, v{ACC+4*(k+4)}, vcc")
    A(f"s_mov_b64 exec, s[{sEx}:{sEx+1}]")
    A(f"buffer_store_dwordx4 {vr(F)}, v11, {sr(WS_)}, s{sT1} offen sc1")
    A("s_endpgm")
    A.lab("L_h3")
    A.c("---- H3 reduce: wave 6 of WGs < 224")
    A("s_cmp_ge_u32 s2, 224")
    A("s_cbranch_scc1 L_end")
    A(f"s_lshl_b32 s{sT1}, s2, 12")
    A(f"s_add_u32 s{sT1}, s{sT1}, {H3_OFF}")
    A(f"v_lshlrev_b32 v11, 4, v{vLane}")
    A(f"s_mov_b32 s{sSpin}, 0")
    A.lab("L_h3poll")
    for k in range(4):
        A(f"buffer_load_dwordx4 {vr(F+4*k)}, v11, {sr(WS_)}, s{sT1} offen offset:{1024*k} sc1")
    A("s_waitcnt vmcnt(0)")
    A(f"v_max3_u32 v12, v{F}, v{F+1}, v{F+2}")
    for k in range(3, 15, 2):
        A(f"v_max3_u32 v12, v12, v{F+k}, v{F+k+1}")
    A(f"v_max_u32 v12, v12, v{F+15}")
    A("v_cmp_eq_u32 vcc, -1, v12")
    A(f"s_add_u32 s{sSpin}, s{sSpin}, 1")
    A(f"s_cmp_gt_u32 s{sSpin}, {maxspin}")
    A("s_cbranch_scc1 L_h3got")
    A("s_cbranch_vccnz L_h3poll")
    A.lab("L_h3got")
    for i in range(4):
        A(f"v_add_f32 v{F+i}, v{F+i}, v{F+4+i}")
        A(f"v_add_f32 v{F+8+i}, v{F+8+i}, v{F+12+i}")
    for i in range(4):
        A(f"v_add_f32 v{F+i}, v{F+i}, v{F+8+i}")
    A("s_nop 1")
    allreduce_add([F, F+1, F+2, F+3], [F+4, F+5, F+6, F+7])
    A(f"v_cvt_pk_bf16_f32 v{F+8}, v{F}, v{F+1}")
    A(f"v_cvt_pk_bf16_f32 v{F+9}, v{F+2}, v{F+3}")
    A(f"s_lshl_b32 s{sT1}, s2, 3")
    A("s_mov_b64 exec, 1")
    A(f"buffer_store_dwordx2 {vr(F+8,2)}, off, {sr(OUT_)}, s{sT1}")
    A.lab("L_end")
    A("s_endpgm")

    out = [HEADER.rstrip("\n"),
           "; Override launch geometry by editing the next line (default: block=256,",
           "; grid=ceil(out_elems/256), lds=0). Harness parses it; keep it on one line.",
           f"; @launch grid=(256,1,1) block=(512,1,1) lds={LDS_BYTES}",
           '.amdgcn_target "amdgcn-amd-amdhsa--gfx950"', ".text", f".globl {KNAME}", ".p2align 8",
           f".type {KNAME},@function", f"{KNAME}:"]
    out += A.L
    out += ['.section .rodata,"a"', ".p2align 6", f".amdhsa_kernel {KNAME}",
            "  .amdhsa_next_free_vgpr 256", "  .amdhsa_next_free_sgpr 102", "  .amdhsa_accum_offset 256",
            "  .amdhsa_group_segment_fixed_size 0", "  .amdhsa_kernarg_size 112", "  .amdhsa_user_sgpr_count 2",
            "  .amdhsa_user_sgpr_kernarg_segment_ptr 1", "  .amdhsa_system_sgpr_workgroup_id_x 1", ".end_amdhsa_kernel"]
    return "\n".join(out) + "\n"

if __name__ == "__main__":
    ap = argparse.ArgumentParser()
    ap.add_argument("-o", default="gated_mix__gqa_block_cached__gqa_block_cached__decode.s")
    ap.add_argument("--static", action="store_true")
    ap.add_argument("--stamps", action="store_true")
    ap.add_argument("--nt", default="nt")
    a = ap.parse_args()
    open(a.o, "w").write(gen(dynamic=not a.static, stamps=a.stamps, nt=a.nt))
    print("wrote", a.o)
```

```python
import sys, argparse, struct

KNAME = "gated_mix__gqa_block_cached__gqa_block_cached__decode_kernel"
HEADER = open("gated_mix__gqa_block_cached__gqa_block_cached__decode.s.ref").read().split("; Override launch")[0]

QBUF_OFF = 0x0
POOL_OFF = 0x10000
H2_OFF   = 0x20000
H2_PSTRIDE = 320
H2_CSTRIDE = 16 * H2_PSTRIDE
H3_OFF   = 0x200000
H3_PSTRIDE = 7168
DBG_OFF  = 0x400000
WS_BYTES = 0x800000
NRED = 56

L_QP  = 0
L_QF  = 4096
L_ML  = L_QF + 1024
L_GATE = L_ML + 128
L_FLAG = L_GATE + 16
L_Y2  = L_GATE + 64
L_ACC = 6144
L_Y   = L_ACC
LDS_BYTES = 96 * 1024

C_SCALE = 1.4426950408889634 / 16.0
def f2u(f): return struct.unpack("<I", struct.pack("<f", f))[0]

class G:
    def __init__(s): s.L = []
    def __call__(s, t): s.L.append("    " + t)
    def lab(s, t): s.L.append(t + ":")
    def c(s, t): s.L.append("    ; " + t)

def vr(a, n=4): return f"v[{a}:{a+n-1}]"
def sr(a, n=4): return f"s[{a}:{a+n-1}]"
DPPM = "row_mask:0xf bank_mask:0xf"

def gen(dynamic=True, stamps=False, nt="nt", maxspin=400000, opt=None):
    opt = opt or {}
    A = G()
    sG, sJ, sB, sSP, sBR, sKVH, sW = 3, 4, 5, 6, 7, 8, 9
    sCur, sCur2, sNxt, sNxt2 = 10, 11, 12, 13
    sT0, sT1, sT2 = 14, 15, 88
    K_, V_, WQ_, WO_, WS_, X_, GW_, OUT_, DB_ = 44, 48, 52, 56, 60, 64, 68, 72, 76
    sSelLo, sSelHi, sC = 80, 81, 82
    sPool = 83
    sM2 = 84
    sA0, sA1 = 86, 87
    sSpin = 89
    sEx = 90
    sTs = 92
    sTnext = 100
    sNon = 101
    sRot = 40
    sWid = 43
    vLane, vR, vGq, vKoff, vVoff, vTick, vM, vLs, vMsk = 2, 3, 4, 5, 6, 7, 8, 9, 10
    KA, VB, F, ACC, QB = 16, 48, 80, 112, 144
    D = F
    S, P, AF, TT = 152, 156, 160, 164
    X1, X2 = 180, 212
    vGN = 244
    PX = 246
    WR = X1

    def tst(k):
        if stamps:
            A(f"s_memrealtime s[{32+2*k}:{33+2*k}]"); A("s_waitcnt lgkmcnt(0)")
    def xst(k):
        if stamps:
            A(f"s_memrealtime s[{16+2*k}:{17+2*k}]"); A("s_waitcnt lgkmcnt(0)")
    def rec_store(first_sgpr, n, off, lg):
        A("s_mov_b64 exec, 1")
        A(f"s_lshl_b32 s{sT1}, s2, 3"); A(f"s_add_u32 s{sT1}, s{sT1}, s{sW}")
        A(f"s_lshl_b32 s{sT1}, s{sT1}, {lg}"); A(f"s_add_u32 s{sT1}, s{sT1}, {off}")
        for k in range(n): A(f"v_mov_b32 v{TT+k}, s{first_sgpr+k}")
        for k in range(0, n, 4):
            A(f"buffer_store_dwordx4 v[{TT+k}:{TT+k+3}], off, {sr(WS_)}, s{sT1} offset:{4*k}")
        A("s_waitcnt vmcnt(0)")
        A("s_mov_b64 exec, -1")

    A.c("entry")
    A("s_cmp_ge_u32 s2, 256")
    A("s_cbranch_scc1 L_end")
    A(f"s_memrealtime s[{sTs}:{sTs+1}]")
    A("s_load_dwordx16 s[16:31], s[0:1], 0")
    A("s_load_dwordx8 s[32:39], s[0:1], 64")
    A("s_load_dwordx4 s[40:43], s[0:1], 96")
    A("v_lshrrev_b32 v1, 6, v0")
    A(f"v_and_b32 v{vLane}, 63, v0")
    A(f"v_readfirstlane_b32 s{sW}, v1")
    A(f"s_lshr_b32 s{sG}, s2, 4")
    A(f"s_and_b32 s{sJ}, s2, 15")
    A(f"s_lshr_b32 s{sB}, s{sJ}, 3")
    A(f"s_and_b32 s{sSP}, s{sJ}, 7")
    A(f"s_lshr_b32 s{sBR}, s{sG}, 3")
    A(f"s_and_b32 s{sKVH}, s{sG}, 7")
    A(f"v_and_b32 v{vR}, 15, v{vLane}")
    A(f"v_lshrrev_b32 v{vGq}, 4, v{vLane}")
    A(f"v_lshrrev_b32 v11, 2, v{vR}")
    A(f"v_lshlrev_b32 v11, 9, v11")
    A(f"v_and_b32 v12, 3, v{vR}")
    A(f"v_lshlrev_b32 v12, 4, v12")
    A(f"v_lshlrev_b32 v13, 6, v{vGq}")
    A(f"v_add3_u32 v{vKoff}, v11, v12, v13")
    A(f"v_lshlrev_b32 v11, 9, v{vGq}")
    A(f"v_lshlrev_b32 v12, 4, v{vR}")
    A(f"v_add_u32 v{vVoff}, v11, v12")
    A(f"s_mov_b32 s{sSelLo}, 0x05040100")
    A(f"s_mov_b32 s{sSelHi}, 0x07060302")
    A(f"s_mov_b32 s{sC}, {f2u(C_SCALE):#x}")
    A(f"s_mov_b32 s{sM2}, 0x00030003")
    A(f"s_mov_b32 s{sM2+1}, 0x00030003")
    A(f"v_cndmask_b32 v{vMsk}, 0, -1, s[{sM2}:{sM2+1}]")
    A(f"s_lshl_b32 s{sT0}, s{sSP}, 3")
    A(f"s_add_u32 s{sT0}, s{sT0}, s{sW}")
    A(f"s_lshl_b32 s{sPool}, s{sG}, 1")
    A(f"s_add_u32 s{sPool}, s{sPool}, s{sB}")
    A(f"s_lshl_b32 s{sPool}, s{sPool}, 8")
    A(f"s_add_u32 s{sPool}, s{sPool}, {POOL_OFF}")
    A(f"s_lshl_b32 s{sT1}, s{sB}, 3")
    A(f"s_add_u32 s{sT1}, s{sT1}, s{sKVH}")
    A(f"s_lshl_b32 s{sT1}, s{sT1}, 22")
    A("s_waitcnt lgkmcnt(0)")
    A(f"s_cmp_eq_u32 s{sBR}, 0")
    for (srd, a, b_) in ((WQ_, 22, 32), (K_, 18, 28), (V_, 20, 30), (WO_, 24, 34)):
        A(f"s_cselect_b32 s{srd}, s{a}, s{b_}")
        A(f"s_cselect_b32 s{srd+1}, s{a+1}, s{b_+1}")
    for srd in (K_, V_):
        A(f"s_add_u32 s{srd}, s{srd}, s{sT1}")
        A(f"s_addc_u32 s{srd+1}, s{srd+1}, 0")
        A(f"s_mov_b32 s{srd+2}, 0x400000")
        A(f"s_mov_b32 s{srd+3}, 0x20000")
    for srd in (WQ_, WO_):
        A(f"s_mov_b32 s{srd+2}, {448*4096*2}")
        A(f"s_mov_b32 s{srd+3}, 0x20000")
    for (srd, a, n) in ((WS_, 42, WS_BYTES), (X_, 16, 1792), (GW_, 36, 896), (OUT_, 38, 1792), (DB_, 40, 256)):
        A(f"s_mov_b32 s{srd}, s{a}")
        A(f"s_mov_b32 s{srd+1}, s{a+1}")
        A(f"s_mov_b32 s{srd+2}, {n}")
        A(f"s_mov_b32 s{srd+3}, 0x20000")
    A(f"s_mov_b32 s{sWid}, s{sT0}")
    A(f"s_lshr_b32 s{sRot}, s2, 3")
    A(f"s_mul_i32 s{sRot}, s{sRot}, {opt.get('rot', 17)}")

    def tile_off(dst, dst2, tile_sgpr, add):
        A(f"s_add_u32 s{dst}, s{tile_sgpr}, s{sRot}")
        if add: A(f"s_add_u32 s{dst}, s{dst}, {add}")
        A(f"s_and_b32 s{dst}, s{dst}, 511")
        A(f"s_lshl_b32 s{dst}, s{dst}, 13")
        A(f"s_add_u32 s{dst2}, s{dst}, 4096")
    def k_load(base, j, cur, cur2):
        g_, hf = j >> 1, j & 1
        so = cur if g_ < 2 else cur2
        A(f"buffer_load_dwordx4 {vr(base+4*j)}, v{vKoff}, {sr(K_)}, s{so} offen offset:{(g_&1)*2048+hf*256} {nt}")
    def v_load(base, j, cur, cur2):
        hf, jp = j >> 2, j & 3
        so = cur if jp < 2 else cur2
        if opt.get("vrot"):
            if j == 0:
                A(f"s_add_u32 s41, s{cur}, {opt['vrot']*8192}")
                A(f"s_and_b32 s41, s41, 0x3fffff")
                A(f"s_cmp_ge_u32 s{cur}, 0x400000")
                A(f"s_cselect_b32 s41, s{cur}, s41")
                A(f"s_add_u32 s42, s41, 4096")
            so = 41 if jp < 2 else 42
        A(f"buffer_load_dwordx4 {vr(base+4*j)}, v{vVoff}, {sr(V_)}, s{so} offen offset:{(jp&1)*2048+hf*256} {nt}")
    def prefetch(n):
        tile_off(sCur, sCur2, sWid, 64*n)
        for j in range(8): k_load((KA, X1)[n], j, sCur, sCur2)
        for j in range(8): v_load((VB, X2)[n], j, sCur, sCur2)
    def prefetch_all():
        prefetch(0); prefetch(1)
    def wo_perm():
        for i in range(4):
            for d in range(4):
                A(f"v_perm_b32 v{KA+4*(2*d)+i}, v{WR+4*(2*i+1)+d}, v{WR+4*(2*i)+d}, s{sSelLo}")
                A(f"v_perm_b32 v{KA+4*(2*d+1)+i}, v{WR+4*(2*i+1)+d}, v{WR+4*(2*i)+d}, s{sSelHi}")
    def allreduce_add(regs, tmp, ctls):
        for ctl in ctls:
            for r_ in regs:
                A(f"v_add_f32_dpp v{r_}, v{r_}, v{r_} {ctl} {DPPM}")
            A("s_nop 1")
        for sw in ("v_permlane16_swap_b32", "v_permlane32_swap_b32"):
            for r_, t_ in zip(regs, tmp): A(f"v_mov_b32 v{t_}, v{r_}")
            A("s_nop 1")
            for r_, t_ in zip(regs, tmp): A(f"{sw} v{r_}, v{t_}")
            A("s_nop 1")
            for r_, t_ in zip(regs, tmp): A(f"v_add_f32 v{r_}, v{r_}, v{t_}")
            A("s_nop 1")

    A(f"s_cmp_eq_u32 s{sW}, 0")
    A("s_cbranch_scc1 L_helper")
    A(f"s_cmp_lt_u32 s{sW}, 5")
    A("s_cbranch_scc1 L_qproj")
    A("s_barrier")
    prefetch(0)
    if opt.get("stage"):
        for j in range(8): k_load(X1, j, sNxt, sNxt2) if False else None
        tile_off(sCur, sCur2, sWid, 64)
        for j in range(8): k_load(X1, j, sCur, sCur2)
        A("s_barrier")
        A("s_barrier")
        for j in range(8): v_load(X2, j, sCur, sCur2)
    else:
        A("s_barrier")
        prefetch(1)
    A("s_branch L_qwait")
    A.lab("L_qproj")
    A.c("---- waves 1..4: q-proj partial (128 rows each)")
    A(f"s_sub_u32 s{sT0}, s{sW}, 1")
    A(f"v_lshrrev_b32 v11, 2, v{vLane}")
    A(f"v_and_b32 v12, 3, v{vLane}")
    A(f"s_lshl_b32 s{sT1}, s{sT0}, 7")
    A(f"v_lshlrev_b32 v11, 3, v11")
    A(f"v_add_u32 v11, s{sT1}, v11")
    A(f"v_lshlrev_b32 v13, 1, v11")
    A(f"v_lshlrev_b32 v11, 13, v11")
    A(f"v_lshlrev_b32 v12, 4, v12")
    A(f"v_add_u32 v14, v11, v12")
    A(f"s_lshl_b32 s{sT1}, s{sKVH}, 10")
    A(f"s_lshl_b32 s{sT2}, s{sJ}, 6")
    A(f"s_add_u32 s{sT1}, s{sT1}, s{sT2}")
    QW = KA
    for jj in range(8):
        A(f"buffer_load_dwordx4 {vr(QW+4*jj)}, v14, {sr(WQ_)}, s{sT1} offen {nt}")
        if jj < 7: A(f"s_add_u32 s{sT1}, s{sT1}, 8192")
    A(f"buffer_load_dwordx4 {vr(PX)}, v13, {sr(X_)}, 0 offen")
    A(f"buffer_load_dwordx4 {vr(PX+4)}, v13, {sr(X_)}, 0 offen offset:896")
    A("s_barrier")
    QA = F
    for k in range(16): A(f"v_mov_b32 v{QA+k}, 0")
    A("s_waitcnt vmcnt(0)")
    xst(0)
    for a in range(4):
        for d in range(4):
            A(f"v_perm_b32 v{TT+2*d}, v{QW+4*(2*a+1)+d}, v{QW+4*(2*a)+d}, s{sSelLo}")
            A(f"v_perm_b32 v{TT+2*d+1}, v{QW+4*(2*a+1)+d}, v{QW+4*(2*a)+d}, s{sSelHi}")
        for b_ in range(2):
            for cc in range(8):
                A(f"v_dot2_f32_bf16 v{QA+8*b_+cc}, v{TT+cc}, v{PX+4*b_+a}, v{QA+8*b_+cc}")
    A("s_nop 3")
    for ctl in ("row_ror:4", "row_ror:8"):
        for k in range(16):
            A(f"v_add_f32_dpp v{QA+k}, v{QA+k}, v{QA+k} {ctl} {DPPM}")
    A("s_nop 1")
    for k in range(0, 16, 2):
        A(f"v_permlane16_swap_b32 v{QA+k}, v{QA+k+1}")
    A("s_nop 1")
    for k in range(0, 16, 2):
        A(f"v_add_f32 v{QA+k}, v{QA+k}, v{QA+k+1}")
    A("s_nop 1")
    for k in range(0, 16, 4):
        A(f"v_permlane32_swap_b32 v{QA+k}, v{QA+k+2}")
    A("s_nop 1")
    for k in range(0, 16, 4):
        A(f"v_add_f32 v{QA+k}, v{QA+k}, v{QA+k+2}")
    A(f"s_lshl_b32 s{sT2}, s{sT0}, 10")
    A(f"v_lshlrev_b32 v11, 2, v{vLane}")
    A(f"v_add_u32 v11, s{sT2}, v11")
    for k in range(4):
        A(f"ds_write_b32 v11, v{QA+4*k} offset:{L_QP+256*k}")
    A("s_waitcnt lgkmcnt(0)")
    xst(1)
    A("s_barrier")
    xst(2)
    if opt.get("stage"): A("s_barrier")
    prefetch_all()
    A.lab("L_qwait")
    xst(3)
    A(f"v_mov_b32 v11, {L_FLAG}")
    A.lab("L_qspin")
    A("ds_read_b32 v12, v11")
    A("s_waitcnt lgkmcnt(0)")
    A(f"v_readfirstlane_b32 s{sT1}, v12")
    A(f"s_cmp_lg_u32 s{sT1}, 0")
    A("s_cbranch_scc1 L_main")
    A("s_sleep 1")
    A("s_branch L_qspin")

    A.lab("L_helper")
    A.c("---- wave 0: nonce, pool init, gate, q reduce/publish/poll")
    PW = F
    if opt.get("prio", 1): A("s_setprio 3")
    A(f"s_or_b32 s{sT1}, s{sTs}, 1")
    A(f"v_mov_b32 v14, s{sT1}")
    A("v_mov_b32 v15, 0")
    A(f"v_mov_b32 v{vGN}, s{sT1}")
    A(f"v_mov_b32 v{vGN+1}, 0")
    A(f"s_lshl_b32 s{sT2}, s{sG}, 4")
    A("s_mov_b64 exec, 1")
    A(f"buffer_atomic_cmpswap v[14:15], off, {sr(DB_)}, s{sT2} sc0")
    A(f"s_cmp_lg_u32 s{sSP}, 0")
    A("s_cbranch_scc1 L_h_nopool")
    A("v_mov_b32 v12, 0")
    A(f"buffer_store_dword v12, off, {sr(WS_)}, s{sPool} sc1")
    A.lab("L_h_nopool")
    A("s_mov_b64 exec, -1")
    A(f"v_lshlrev_b32 v11, 4, v{vLane}")
    A(f"buffer_load_dwordx4 {vr(PX)}, v11, {sr(X_)}, 0 offen")
    A(f"buffer_load_dwordx4 {vr(PX+4)}, v11, {sr(X_)}, 0 offen offset:896")
    A(f"buffer_load_dwordx4 {vr(PW)}, v11, {sr(GW_)}, 0 offen")
    A(f"v_mov_b32 v12, {L_FLAG}")
    A("v_mov_b32 v13, 0")
    A("ds_write_b32 v12, v13")
    A("s_waitcnt lgkmcnt(0)")
    A("s_barrier")
    A("s_waitcnt vmcnt(0)")
    xst(0)
    A(f"v_readfirstlane_b32 s{sNon}, v14")
    A(f"s_cmp_eq_u32 s{sNon}, 0")
    A(f"s_cselect_b32 s{sNon}, s{sT1}, s{sNon}")
    A("v_mov_b32 v12, 0"); A("v_mov_b32 v13, 0")
    for d in range(4):
        A(f"v_dot2_f32_bf16 v12, v{PX+d}, v{PW+d}, v12")
        A(f"v_dot2_f32_bf16 v13, v{PX+4+d}, v{PW+d}, v13")
    A("s_nop 3")
    allreduce_add([12, 13], [14, 15], ["quad_perm:[1,0,3,2]", "quad_perm:[2,3,0,1]", "row_half_mirror", "row_mirror"])
    A(f"s_mov_b32 s{sT1}, {f2u(-1.4426950408889634):#x}")
    A(f"s_mov_b32 s{sT2}, {f2u(1.4426950408889634):#x}")
    A(f"s_cmp_eq_u32 s{sBR}, 0")
    A(f"s_cselect_b32 s{sT1}, s{sT1}, s{sT2}")
    A(f"v_mul_f32 v12, s{sT1}, v12"); A(f"v_mul_f32 v13, s{sT1}, v13")
    A("v_exp_f32 v12, v12"); A("v_exp_f32 v13, v13")
    A("s_nop 0")
    A("v_add_f32 v12, 1.0, v12"); A("v_add_f32 v13, 1.0, v13")
    A("v_rcp_f32 v12, v12"); A("v_rcp_f32 v13, v13")
    A(f"v_mov_b32 v14, s{sNon}")
    A(f"v_mov_b32 v11, {L_GATE}")
    A("ds_write_b64 v11, v[12:13]")
    A("ds_write_b32 v11, v14 offset:8")
    A(f"v_lshrrev_b32 v11, 5, v{vLane}")
    A(f"v_lshlrev_b32 v11, 9, v11")
    A(f"v_bfe_u32 v12, v{vLane}, 2, 1")
    A(f"v_lshlrev_b32 v12, 8, v12")
    A(f"v_and_b32 v13, 3, v{vLane}")
    A(f"v_lshlrev_b32 v13, 6, v13")
    A(f"v_add3_u32 v11, v11, v12, v13")
    A(f"v_bfe_u32 v12, v{vLane}, 3, 2")
    A(f"v_lshlrev_b32 v12, 2, v12")
    A(f"v_add_u32 v11, v11, v12")
    A(f"v_lshrrev_b32 v14, 5, v{vLane}")
    A(f"v_lshlrev_b32 v14, 11, v14")
    A(f"v_and_b32 v12, 31, v{vLane}")
    A(f"v_lshlrev_b32 v12, 2, v12")
    A(f"v_add_u32 v14, v14, v12")
    A(f"v_lshlrev_b32 v15, 5, v{vLane}")
    A(f"s_lshl_b32 s{sT1}, s{sG}, 12")
    A(f"s_lshl_b32 s{sT2}, s{sJ}, 7")
    A(f"s_add_u32 s{sT1}, s{sT1}, s{sT2}")
    A(f"s_lshl_b32 s{sT0}, s{sG}, 12")
    A(f"s_lshl_b32 s{sT2}, s{sB}, 11")
    A(f"s_add_u32 s{sT0}, s{sT0}, s{sT2}")
    A(f"s_mov_b32 s{sEx}, 0x55555555"); A(f"s_mov_b32 s{sEx+1}, 0x55555555")
    A(f"v_mov_b32 v{TT+5}, s{sNon}")
    A("s_waitcnt lgkmcnt(0)")
    xst(1)
    A("s_barrier")
    xst(2)
    for k in range(4):
        A(f"ds_read_b32 v{TT+k}, v11 offset:{L_QP+1024*k}")
    A("s_waitcnt lgkmcnt(0)")
    A(f"v_add_f32 v{TT}, v{TT}, v{TT+1}")
    A(f"v_add_f32 v{TT+2}, v{TT+2}, v{TT+3}")
    A(f"v_add_f32 v{TT}, v{TT}, v{TT+2}")
    A("s_nop 1")
    A(f"v_mov_b32_dpp v{TT+1}, v{TT} quad_perm:[1,1,3,3] {DPPM}")
    A("s_nop 0")
    A(f"v_cvt_pk_bf16_f32 v{TT+4}, v{TT}, v{TT+1}")
    A(f"s_mov_b64 exec, s[{sEx}:{sEx+1}]")
    A(f"buffer_store_dwordx2 {vr(TT+4,2)}, v14, {sr(WS_)}, s{sT1} offen offset:{QBUF_OFF} sc1")
    A("s_mov_b64 exec, 1")
    A(f"buffer_atomic_cmpswap {vr(vGN,2)}, off, {sr(DB_)}, 0 offset:4 sc0")
    A("s_mov_b64 exec, -1")
    xst(3)
    def qpoll(r):
        A(f"buffer_load_dwordx4 {vr(r)}, v15, {sr(WS_)}, s{sT0} offen offset:{QBUF_OFF} sc1")
        A(f"buffer_load_dwordx4 {vr(r+4)}, v15, {sr(WS_)}, s{sT0} offen offset:{QBUF_OFF+16} sc1")
    def qcheck(r, lab):
        A(f"v_xor_b32 v11, s{sNon}, v{r+1}")
        for k in (3, 5, 7):
            A(f"v_xor_b32 v12, s{sNon}, v{r+k}")
            A("v_or_b32 v11, v11, v12")
        A("v_cmp_ne_u32 vcc, 0, v11")
        A(f"s_cbranch_vccz {lab}")
    PB, PC = S, TT+8
    q1, q2 = opt.get("q1", 8), opt.get("q2", 16)
    if q1: A(f"s_sleep {q1}")
    qpoll(QB)
    if opt.get("stage") == 1: A("s_barrier")
    A(f"s_sleep {q2}")
    if opt.get("stage") == 2:
        qpoll(PB); A("s_barrier")
        A(f"s_sleep {q2}")
        qpoll(PC)
        A("s_branch L_qchk")
    qpoll(PB)
    A(f"s_sleep {q2}")
    qpoll(PC)
    A.lab("L_qchk")
    A("s_waitcnt vmcnt(4)"); qcheck(QB, "L_qgot")
    A("s_waitcnt vmcnt(2)"); qcheck(PB, "L_qgotB")
    A("s_waitcnt vmcnt(0)"); qcheck(PC, "L_qgotC")
    A(f"s_mov_b32 s{sSpin}, 0")
    A.lab("L_qpoll")
    qpoll(QB)
    A("s_waitcnt vmcnt(0)"); qcheck(QB, "L_qgot")
    A(f"s_add_u32 s{sSpin}, s{sSpin}, 1")
    A(f"s_cmp_lt_u32 s{sSpin}, {maxspin}")
    A("s_cbranch_scc1 L_qpoll")
    A("s_branch L_qgot")
    A.lab("L_qgotB")
    for k in range(8): A(f"v_mov_b32 v{QB+k}, v{PB+k}")
    A("s_branch L_qgot")
    A.lab("L_qgotC")
    for k in range(8): A(f"v_mov_b32 v{QB+k}, v{PC+k}")
    A.lab("L_qgot")
    xst(4)
    A(f"v_mov_b32 v{QB+1}, v{QB+2}")
    A(f"v_mov_b32 v{QB+2}, v{QB+4}")
    A(f"v_mov_b32 v{QB+3}, v{QB+6}")
    A(f"v_lshlrev_b32 v11, 4, v{vLane}")
    A(f"ds_write_b128 v11, {vr(QB)} offset:{L_QF}")
    A(f"v_readfirstlane_b32 s{sT1}, v{vGN}")
    A(f"s_or_b32 s{sT2}, s{sTs}, 1")
    A(f"s_cmp_eq_u32 s{sT1}, 0")
    A(f"s_cselect_b32 s{sT1}, s{sT2}, s{sT1}")
    A(f"v_mov_b32 v12, s{sT1}")
    A(f"v_mov_b32 v11, {L_GATE}")
    A("ds_write_b32 v11, v12 offset:12")
    A("v_mov_b32 v13, 1")
    A("s_waitcnt lgkmcnt(0)")
    A(f"ds_write_b32 v11, v13 offset:{L_FLAG-L_GATE}")
    A("s_waitcnt vmcnt(0)")
    if opt.get("prio", 1): A("s_setprio 0")
    prefetch_all()
    xst(5)

    A.lab("L_main")
    if stamps: rec_store(16, 12, DBG_OFF + 0x20000, 6)
    A(f"v_and_b32 v11, 1, v{vR}")
    A(f"v_lshlrev_b32 v11, 9, v11")
    A(f"v_bfe_u32 v12, v{vR}, 1, 2")
    A(f"v_lshlrev_b32 v12, 4, v12")
    A(f"v_lshlrev_b32 v13, 6, v{vGq}")
    A(f"v_add3_u32 v11, v11, v12, v13")
    A(f"ds_read_b128 {vr(QB)}, v11 offset:{L_QF}")
    A(f"ds_read_b128 {vr(QB+4)}, v11 offset:{L_QF+256}")
    for k in range(32): A(f"v_mov_b32 v{ACC+k}, 0")
    A(f"v_mov_b32 v{vM}, 0xff7fffff")
    A(f"v_mov_b32 v{vLs}, 0")
    tile_off(sNxt, sNxt2, sWid, 128)
    A("s_waitcnt lgkmcnt(0)")
    if stamps:
        A(f"s_memrealtime s[{sTs+2}:{sTs+3}]")
    sat = opt.get("sat", 1)
    a1 = 1 if (dynamic and not sat) else 0
    nocomp = opt.get("nocomp")
    sTk = 41

    def body(tag, kb, vb, mode):
        for j in range(8):
            g_, hf = j >> 1, j & 1
            if mode == 2 and j: A(f"s_waitcnt vmcnt({7+a1})")
            c_ = "0" if hf == 0 else vr(D+4*g_)
            if not nocomp:
                A(f"v_mfma_f32_16x16x32_bf16 {vr(D+4*g_)}, {vr(kb+4*j)}, {vr(QB+4*hf)}, {c_}")
            if mode == 2: v_load(VB, j, sCur, sCur2)
        if not nocomp:
            if mode != 2: A("s_nop 2")
            for g_ in range(3):
                A(f"v_add_f32_dpp v{TT+2*g_}, v{D+4*g_+1}, v{D+4*g_+0} row_shl:2 {DPPM} bound_ctrl:0")
                A(f"v_add_f32_dpp v{TT+2*g_+1}, v{D+4*g_+3}, v{D+4*g_+2} row_shl:2 {DPPM} bound_ctrl:0")
            A("s_nop 3")
            A(f"v_add_f32_dpp v{TT+6}, v{D+13}, v{D+12} row_shl:2 {DPPM} bound_ctrl:0")
            A(f"v_add_f32_dpp v{TT+7}, v{D+15}, v{D+14} row_shl:2 {DPPM} bound_ctrl:0")
            for g_ in range(3):
                A(f"v_add_f32_dpp v{S+g_}, v{TT+2*g_+1}, v{TT+2*g_} row_shl:4 {DPPM} bound_ctrl:0")
            A(f"v_add_f32_dpp v{S+3}, v{TT+7}, v{TT+6} row_shl:4 {DPPM} bound_ctrl:0")
            A(f"v_max3_f32 v11, v{S}, v{S+1}, v{S+2}")
            A(f"v_max_f32 v11, v11, v{S+3}")
            A("v_mov_b32 v12, v11")
            A("s_nop 1")
            A("v_permlane32_swap_b32 v11, v12")
            A("s_nop 1")
            A("v_max_f32 v11, v11, v12")
            A("v_mov_b32 v12, v11")
            A("s_nop 1")
            A("v_permlane16_swap_b32 v11, v12")
            A("s_nop 1")
            A(f"v_max3_f32 v11, v11, v12, v{vM}")
            A(f"v_cmp_gt_f32 vcc, v11, v{vM}")
            A(f"s_and_b64 vcc, vcc, s[{sM2}:{sM2+1}]")
            A(f"s_cbranch_scc0 L_norescale{tag}")
            A(f"v_sub_f32 v12, v{vM}, v11")
            A(f"v_mul_f32 v12, s{sC}, v12")
            A("v_exp_f32 v12, v12")
            A("s_nop 1")
            A(f"v_readlane_b32 s{sA0}, v12, 0")
            A(f"v_readlane_b32 s{sA1}, v12, 1")
            A(f"v_mul_f32 v{vLs}, v{vLs}, v12")
            A("s_nop 1")
            for e in range(8):
                for i in range(4):
                    A(f"v_mul_f32 v{ACC+4*e+i}, s{sA0 if (i&1)==0 else sA1}, v{ACC+4*e+i}")
            A.lab(f"L_norescale{tag}")
            A(f"v_mov_b32 v{vM}, v11")
            A(f"v_mul_f32 v12, s{sC}, v11")
            for g_ in range(4):
                A(f"v_fma_f32 v{P+g_}, v{S+g_}, s{sC}, -v12")
            for g_ in range(4):
                A(f"v_exp_f32 v{P+g_}, v{P+g_}")
            A("s_nop 0")
            A(f"v_cvt_pk_bf16_f32 v{AF}, v{P}, v{P+1}")
            A(f"v_cvt_pk_bf16_f32 v{AF+1}, v{P+2}, v{P+3}")
            A(f"v_add_f32 v12, v{P}, v{P+1}")
            A(f"v_add_f32 v13, v{P+2}, v{P+3}")
            A(f"v_and_b32 v{AF}, v{AF}, v{vMsk}")
            A(f"v_and_b32 v{AF+1}, v{AF+1}, v{vMsk}")
            A("v_add_f32 v12, v12, v13")
            A(f"v_add_f32 v{vLs}, v{vLs}, v12")
            A(f"v_mov_b32_dpp v{AF+2}, v{AF} row_shr:2 {DPPM} bound_ctrl:0")
            A(f"v_mov_b32_dpp v{AF+3}, v{AF+1} row_shr:2 {DPPM} bound_ctrl:0")
        for i in range(4):
            if mode == 2:
                A("s_waitcnt vmcnt(6)")
                if i == 0:
                    if dynamic and sat:
                        A("s_waitcnt lgkmcnt(0)")
                        A(f"s_add_u32 s{sTnext}, s{sTk}, 192")
                    elif dynamic:
                        A(f"v_readfirstlane_b32 s{sTnext}, v{vTick}")
                        A(f"s_add_u32 s{sTnext}, s{sTnext}, 192")
                    else:
                        A(f"s_add_u32 s{sTnext}, s{sTnext}, 64")
                    tile_off(sNxt, sNxt2, sTnext, 0)
                    A(f"s_cmp_lt_u32 s{sTnext}, 512")
                    A(f"s_cselect_b32 s{sNxt}, s{sNxt}, 0x400000")
                    A(f"s_cselect_b32 s{sNxt2}, s{sNxt2}, 0x400000")
            a_, b_ = vb+4*(2*i), vb+4*(2*i+1)
            for d in range(4 if not nocomp else 0):
                A(f"v_perm_b32 v{F+4*(2*d)+i}, v{b_+d}, v{a_+d}, s{sSelLo}")
                A(f"v_perm_b32 v{F+4*(2*d+1)+i}, v{b_+d}, v{a_+d}, s{sSelHi}")
            if mode in (0, 2):
                k_load(KA, 2*i, sNxt, sNxt2); k_load(KA, 2*i+1, sNxt, sNxt2)
        if mode == 1: A("s_nop 1")
        for e in range(8 if not nocomp else 0):
            A(f"v_mfma_f32_16x16x32_bf16 {vr(ACC+4*e)}, {vr(AF)}, {vr(F+4*e)}, {vr(ACC+4*e)}")

    A("s_waitcnt vmcnt(16)")
    body("_a", KA, VB, 0)
    A("s_waitcnt vmcnt(8)")
    body("_b", X1, X2, 1)
    A(f"s_add_u32 s{sTnext}, s{sWid}, 128")
    A.lab("L_loop")
    A(f"s_mov_b32 s{sCur}, s{sNxt}")
    A(f"s_mov_b32 s{sCur2}, s{sNxt2}")
    if dynamic and sat:
        A(f"s_mov_b32 s{sTk}, 1")
        A(f"s_atomic_add s{sTk}, {sr(WS_,2)}, s{sPool} glc")
    elif dynamic:
        A(f"v_mov_b32 v{vTick}, 1")
    A("s_waitcnt vmcnt(7)")
    if dynamic and not sat:
        A("s_mov_b64 exec, 1")
        A(f"buffer_atomic_add v{vTick}, off, {sr(WS_)}, s{sPool} sc0")
        A("s_mov_b64 exec, -1")
    body("_c", KA, VB, 2)
    A(f"s_cmp_lt_u32 s{sTnext}, 512")
    A("s_cbranch_scc1 L_loop")
    A.c("---- wave finish")
    if stamps:
        A(f"s_memrealtime s[{sTs+4}:{sTs+5}]")
    A(f"s_cmp_ge_u32 s{sW}, 4")
    A("s_cbranch_scc1 L_nowo")
    A(f"s_lshl_b32 s{sT1}, s{sKVH}, 9")
    A(f"s_lshl_b32 s{sT2}, s{sJ}, 5")
    A(f"s_add_u32 s{sT1}, s{sT1}, s{sT2}")
    A(f"s_mul_i32 s{sT1}, s{sT1}, 896")
    A(f"s_lshl_b32 s{sT2}, s{sW}, 8")
    A(f"s_add_u32 s{sT1}, s{sT1}, s{sT2}")
    A(f"v_mul_u32_u24 v11, {8*896}, v{vGq}")
    A(f"v_lshlrev_b32 v12, 4, v{vR}")
    A(f"v_add_u32 v15, v11, v12")
    for jj in range(8):
        A(f"buffer_load_dwordx4 {vr(WR+4*jj)}, v15, {sr(WO_)}, s{sT1} offen {nt}")
        if jj < 7: A(f"s_add_u32 s{sT1}, s{sT1}, 896")
    A.lab("L_nowo")
    A(f"v_mov_b32 v12, v{vLs}")
    A(f"v_mov_b32 v13, {L_GATE}")
    A(f"ds_read_b128 {vr(TT+12)}, v13")
    A(f"v_permlane32_swap_b32 v{vLs}, v12")
    A("s_nop 1")
    A(f"v_add_f32 v{vLs}, v{vLs}, v12")
    A(f"v_mov_b32 v12, v{vLs}")
    A("s_nop 1")
    A(f"v_permlane16_swap_b32 v{vLs}, v12")
    A("s_nop 1")
    A(f"v_add_f32 v{vLs}, v{vLs}, v12")
    A(f"s_lshl_b32 s{sT1}, s{sW}, 4")
    A(f"v_lshlrev_b32 v11, 3, v{vLane}")
    A(f"v_add_u32 v11, s{sT1}, v11")
    A(f"s_lshl_b32 s{sT1}, s{sW}, 11")
    A(f"v_lshlrev_b32 v12, 7, v{vLane}")
    A(f"v_add_u32 v12, s{sT1}, v12")
    A("s_mov_b64 exec, 3")
    A(f"ds_write_b64 v11, v[{vM}:{vLs}] offset:{L_ML}")
    A("s_mov_b64 exec, 0xffff")
    for e in range(8):
        A(f"ds_write_b128 v12, {vr(ACC+4*e)} offset:{L_ACC+16*e}")
    A("s_mov_b64 exec, -1")
    A("s_waitcnt lgkmcnt(0)")
    A(f"v_readfirstlane_b32 s{sNon}, v{TT+15}")
    A("s_barrier")
    tst(0)
    A(f"s_cmp_lt_u32 s{sW}, 4")
    A("s_cbranch_scc1 L_h2")
    A(f"s_cmp_gt_u32 s{sW}, 5")
    A("s_cbranch_scc1 L_fin")
    A.c("---- merge: waves 4,5")
    RG = X1
    A(f"v_and_b32 v11, 7, v{vLane}")
    A(f"v_lshlrev_b32 v11, 4, v11")
    A(f"v_bfe_u32 v12, v{vLane}, 3, 1")
    A(f"v_lshlrev_b32 v12, 3, v12")
    A("v_add_u32 v11, v11, v12")
    A(f"ds_read_b64 v[14:15], v11 offset:{L_ML}")
    A(f"s_sub_u32 s{sT1}, s{sW}, 4")
    A(f"s_lshl_b32 s{sT1}, s{sT1}, 10")
    A(f"v_lshlrev_b32 v13, 4, v{vLane}")
    A(f"v_add_u32 v13, s{sT1}, v13")
    for w in range(8):
        A(f"ds_read_b128 {vr(RG+4*w)}, v13 offset:{L_ACC+2048*w}")
    A(f"s_lshl_b32 s{sT1}, s{sG}, 4")
    A(f"s_sub_u32 s{sT2}, s{sW}, 4")
    A(f"s_lshl_b32 s{sT2}, s{sT2}, 1")
    A(f"s_add_u32 s{sT1}, s{sT1}, s{sT2}")
    A(f"s_mul_i32 s{sT1}, s{sT1}, {H2_CSTRIDE}")
    A(f"s_mul_i32 s{sT2}, s{sJ}, {H2_PSTRIDE}")
    A(f"s_add_u32 s{sT1}, s{sT1}, s{sT2}")
    A(f"s_add_u32 s{sT1}, s{sT1}, {H2_OFF}")
    A(f"v_lshrrev_b32 v13, 5, v{vLane}")
    A(f"v_mul_u32_u24 v13, {H2_CSTRIDE}, v13")
    A(f"v_and_b32 v12, 31, v{vLane}")
    A(f"v_lshlrev_b32 v12, 3, v12")
    A("v_add_u32 v13, v13, v12")
    A("s_waitcnt lgkmcnt(8)")
    A("v_mov_b32 v11, v14")
    A("s_nop 1")
    for ctl in ("quad_perm:[1,0,3,2]", "quad_perm:[2,3,0,1]", "row_half_mirror"):
        A(f"v_max_f32_dpp v11, v11, v11 {ctl} {DPPM}")
        A("s_nop 1")
    A("v_sub_f32 v12, v14, v11")
    A(f"v_mul_f32 v12, s{sC}, v12")
    A("v_exp_f32 v12, v12")
    A("s_nop 0")
    A("v_mul_f32 v15, v15, v12")
    for k in range(16):
        A(f"v_readlane_b32 s{16+k}, v12, {k}")
    for ctl in ("quad_perm:[1,0,3,2]", "quad_perm:[2,3,0,1]", "row_half_mirror"):
        A(f"v_add_f32_dpp v15, v15, v15 {ctl} {DPPM}")
        A("s_nop 1")
    for i in range(4): A(f"v_mov_b32 v{TT+2*i+1}, s{sNon}")
    A("s_waitcnt lgkmcnt(0)")
    for i in range(4):
        A(f"v_mul_f32 v{TT+2*i}, s{16+8*(i&1)}, v{RG+i}")
    for w in range(1, 8):
        for i in range(4):
            A(f"v_fma_f32 v{TT+2*i}, v{RG+4*w+i}, s{16+8*(i&1)+w}, v{TT+2*i}")
    for i in range(4):
        half, h = i >> 1, i & 1
        A(f"s_add_u32 s{sT2}, s{sT1}, {(h*8+half*4)*H2_CSTRIDE}")
        A(f"buffer_store_dwordx2 {vr(TT+2*i,2)}, v13, {sr(WS_)}, s{sT2} offen sc1")
    if stamps:
        A("s_memrealtime s[30:31]"); A("s_waitcnt lgkmcnt(0)")
    A(f"s_cmp_lg_u32 s{sW}, 4")
    A("s_cbranch_scc1 L_fin")
    A(f"v_readlane_b32 s16, v11, 0"); A(f"v_readlane_b32 s17, v11, 8")
    A(f"v_readlane_b32 s18, v15, 0"); A(f"v_readlane_b32 s19, v15, 8")
    A(f"v_cmp_gt_u32 vcc, 32, v{vLane}")
    A(f"v_mov_b32 v{TT+8}, s17"); A(f"v_mov_b32 v{TT+10}, s19")
    A(f"v_mov_b32 v12, s16"); A(f"v_mov_b32 v14, s18")
    A(f"v_mov_b32 v{TT+9}, s{sNon}")
    A(f"v_mov_b32 v{TT+11}, s{sNon}")
    A(f"v_cndmask_b32 v{TT+8}, v{TT+8}, v12, vcc")
    A(f"v_cndmask_b32 v{TT+10}, v{TT+10}, v14, vcc")
    A(f"s_lshl_b32 s{sT1}, s{sG}, 4")
    A(f"s_mul_i32 s{sT1}, s{sT1}, {H2_CSTRIDE}")
    A(f"s_mul_i32 s{sT2}, s{sJ}, {H2_PSTRIDE}")
    A(f"s_add_u32 s{sT1}, s{sT1}, s{sT2}")
    A(f"s_add_u32 s{sT1}, s{sT1}, {H2_OFF+256}")
    A(f"v_lshrrev_b32 v13, 2, v{vLane}")
    A(f"v_mul_u32_u24 v13, {H2_CSTRIDE}, v13")
    A(f"v_and_b32 v12, 3, v{vLane}")
    A(f"v_lshlrev_b32 v12, 4, v12")
    A("v_add_u32 v13, v13, v12")
    A(f"buffer_store_dwordx4 {vr(TT+8)}, v13, {sr(WS_)}, s{sT1} offen sc1")
    A("s_branch L_fin")
    A.lab("L_h2")
    A.c("---- H2 consume: wave 0 polls; waves 0..3 project, tau = w")
    vYr, vH3, vYwB, vRd = TT+5, TT+6, TT+7, TT+4
    A(f"v_lshrrev_b32 v11, 1, v{vGq}")
    A(f"v_lshlrev_b32 v11, 9, v11")
    A(f"v_lshlrev_b32 v12, 5, v{vR}")
    A(f"s_lshl_b32 s{sT1}, s{sW}, 10")
    A(f"s_add_u32 s{sT2}, s{sT1}, {L_Y}")
    A(f"v_add3_u32 v{vYwB}, v11, v12, s{sT2}")
    A(f"v_lshlrev_b32 v11, 3, v{vLane}")
    A(f"v_add_u32 v{vYr}, s{sT1}, v11")
    A(f"v_lshlrev_b32 v{vH3}, 4, v{vLane}")
    A(f"v_lshrrev_b32 v11, 3, v{vLane}")
    A(f"v_mul_u32_u24 v11, {H3_PSTRIDE}, v11")
    A(f"v_and_b32 v12, 7, v{vLane}")
    A(f"v_lshlrev_b32 v12, 4, v12")
    A(f"v_add_u32 v{vRd}, v11, v12")
    A(f"s_mov_b32 s{sA0}, 0x0000ffff"); A(f"s_mov_b32 s{sA1}, 0x0000ffff")
    A(f"s_cmp_eq_u32 s{sW}, 3")
    A(f"s_mov_b32 s{sEx}, -1")
    A(f"s_cselect_b32 s{sEx+1}, 0, -1")
    A(f"s_cmp_lg_u32 s{sW}, 0")
    A("s_cbranch_scc1 L_h2wait")
    A(f"s_mul_i32 s{sT1}, s2, {H2_CSTRIDE}")
    A(f"s_add_u32 s{sT1}, s{sT1}, {H2_OFF}")
    A(f"v_mul_u32_u24 v11, {H2_PSTRIDE}, v{vR}")
    A(f"v_lshlrev_b32 v12, 6, v{vGq}")
    A("v_add_u32 v12, v11, v12")
    A(f"s_mov_b32 s{sSpin}, 0")
    A("s_waitcnt vmcnt(0)")
    wo_perm()
    if stamps:
        A("s_memrealtime s[28:29]"); A("s_waitcnt lgkmcnt(0)")
    A.lab("L_h2poll")
    for k in range(4):
        A(f"buffer_load_dwordx4 {vr(F+4*k)}, v12, {sr(WS_)}, s{sT1} offen offset:{16*k} sc1")
    A(f"buffer_load_dwordx4 {vr(F+16)}, v11, {sr(WS_)}, s{sT1} offen offset:256 sc1")
    A("s_waitcnt vmcnt(0)")
    A(f"v_xor_b32 v13, s{sNon}, v{F+1}")
    for k in range(1, 10):
        A(f"v_xor_b32 v14, s{sNon}, v{F+2*k+1}")
        A("v_or_b32 v13, v13, v14")
    A("v_cmp_ne_u32 vcc, 0, v13")
    A("s_cbranch_vccz L_h2got")
    A(f"s_add_u32 s{sSpin}, s{sSpin}, 1")
    A(f"s_cmp_lt_u32 s{sSpin}, {maxspin}")
    A("s_cbranch_scc1 L_h2poll")
    A.lab("L_h2got")
    tst(1)
    if stamps: A(f"s_mov_b32 s41, s{sSpin}")
    mreg, lreg = F+16, F+18
    A(f"v_mov_b32 v13, v{mreg}")
    A("s_nop 1")
    for ctl in ("quad_perm:[1,0,3,2]", "quad_perm:[2,3,0,1]", "row_half_mirror"):
        A(f"v_max_f32_dpp v13, v13, v13 {ctl} {DPPM}")
        A("s_nop 1")
    A(f"v_sub_f32 v13, v{mreg}, v13")
    A(f"v_mul_f32 v13, s{sC}, v13")
    A("v_exp_f32 v13, v13")
    A("s_nop 0")
    A(f"v_mul_f32 v14, v13, v{lreg}")
    for k in range(8):
        A(f"v_mul_f32 v{F+2*k}, v13, v{F+2*k}")
    for ctl in ("quad_perm:[1,0,3,2]", "quad_perm:[2,3,0,1]", "row_half_mirror"):
        A(f"v_add_f32_dpp v14, v14, v14 {ctl} {DPPM}")
        for k in range(8):
            A(f"v_add_f32_dpp v{F+2*k}, v{F+2*k}, v{F+2*k} {ctl} {DPPM}")
    A(f"v_cmp_gt_u32 vcc, 8, v{vR}")
    A("v_rcp_f32 v14, v14")
    A("s_nop 0")
    A(f"v_cndmask_b32 v15, v{TT+13}, v{TT+12}, vcc")
    A("v_mul_f32 v14, v14, v15")
    for k in range(8):
        A(f"v_mul_f32 v{F+2*k}, v14, v{F+2*k}")
    for i in range(4):
        A(f"v_cvt_pk_bf16_f32 v{AF+i}, v{F+4*i}, v{F+4*i+2}")
    A(f"v_lshlrev_b32 v11, 4, v{vLane}")
    A(f"ds_write_b128 v11, {vr(AF)} offset:{L_QF}")
    A("s_waitcnt lgkmcnt(0)")
    A("s_barrier")
    A("s_branch L_h2go")
    A.lab("L_h2wait")
    A("s_waitcnt vmcnt(0)")
    wo_perm()
    A(f"v_lshlrev_b32 v11, 4, v{vLane}")
    A("s_barrier")
    A(f"ds_read_b128 {vr(AF)}, v11 offset:{L_QF}")
    A("s_waitcnt lgkmcnt(0)")
    A.lab("L_h2go")
    for e in range(8):
        A(f"v_mfma_f32_16x16x32_bf16 {vr(ACC+4*e)}, {vr(AF)}, {vr(KA+4*e)}, 0")
    A(f"s_mul_i32 s{sT1}, s2, {H3_PSTRIDE}")
    A(f"s_lshl_b32 s{sT2}, s{sW}, 10")
    A(f"s_add_u32 s{sT1}, s{sT1}, s{sT2}")
    A(f"s_add_u32 s{sT1}, s{sT1}, {H3_OFF}")
    A(f"v_mov_b32 v{F+1}, s{sNon}"); A(f"v_mov_b32 v{F+3}, s{sNon}")
    A(f"v_mov_b32 v{F+5}, s{sNon}"); A(f"v_mov_b32 v{F+7}, s{sNon}")
    A(f"s_mov_b64 exec, s[{sA0}:{sA1}]")
    A("s_nop 1")
    for e in range(0, 8, 2):
        A(f"ds_write2_b32 v{vYwB}, v{ACC+4*e}, v{ACC+4*(e+1)} offset0:{e} offset1:{e+1}")
    A("s_mov_b64 exec, -1")
    A("s_waitcnt lgkmcnt(0)")
    A(f"ds_read_b64 v[{F+8}:{F+9}], v{vYr} offset:{L_Y}")
    A(f"ds_read_b64 v[{F+10}:{F+11}], v{vYr} offset:{L_Y+512}")
    A(f"s_mov_b64 exec, s[{sEx}:{sEx+1}]")
    A("s_waitcnt lgkmcnt(1)")
    A(f"v_mov_b32 v{F}, v{F+8}"); A(f"v_mov_b32 v{F+2}, v{F+9}")
    A(f"buffer_store_dwordx4 {vr(F)}, v{vH3}, {sr(WS_)}, s{sT1} offen sc1")
    A("s_waitcnt lgkmcnt(0)")
    A(f"v_mov_b32 v{F+4}, v{F+10}"); A(f"v_mov_b32 v{F+6}, v{F+11}")
    A(f"buffer_store_dwordx4 {vr(F+4)}, v{vH3}, {sr(WS_)}, s{sT1} offen offset:{112*32} sc1")
    A("s_mov_b64 exec, -1")
    tst(2)
    A(f"s_cmp_ge_u32 s2, {NRED}")
    A("s_cbranch_scc1 L_fin")
    A(f"s_lshl_b32 s{sT1}, s2, 7")
    A(f"s_mul_i32 s{sT2}, s{sW}, {64*H3_PSTRIDE}")
    A(f"s_add_u32 s{sT1}, s{sT1}, s{sT2}")
    A(f"s_add_u32 s{sT1}, s{sT1}, {H3_OFF}")
    A(f"s_mov_b32 s{sSpin}, 0")
    H = X1
    A.lab("L_h3poll")
    A(f"s_mov_b32 s{sT2}, s{sT1}")
    for k in range(8):
        A(f"buffer_load_dwordx4 {vr(H+4*k)}, v{vRd}, {sr(WS_)}, s{sT2} offen sc1")
        if k < 7: A(f"s_add_u32 s{sT2}, s{sT2}, {8*H3_PSTRIDE}")
    A("s_waitcnt vmcnt(0)")
    A(f"v_xor_b32 v13, s{sNon}, v{H+1}")
    for k in range(1, 16):
        A(f"v_xor_b32 v14, s{sNon}, v{H+2*k+1}")
        A("v_or_b32 v13, v13, v14")
    A("v_cmp_ne_u32 vcc, 0, v13")
    A("s_cbranch_vccz L_h3got")
    A(f"s_add_u32 s{sSpin}, s{sSpin}, 1")
    A(f"s_cmp_lt_u32 s{sSpin}, {maxspin}")
    A("s_cbranch_scc1 L_h3poll")
    A.lab("L_h3got")
    tst(3)
    if stamps: A(f"s_mov_b32 s42, s{sSpin}")
    for k in range(1, 8):
        A(f"v_add_f32 v{H}, v{H}, v{H+4*k}")
        A(f"v_add_f32 v{H+1}, v{H+2}, v{H+4*k+2}" if k == 1 else f"v_add_f32 v{H+1}, v{H+1}, v{H+4*k+2}")
    A("s_nop 1")
    allreduce_add([H, H+1], [H+4, H+5], ["row_ror:8"])
    A(f"s_lshl_b32 s{sT1}, s{sW}, 6")
    A(f"v_lshlrev_b32 v11, 3, v{vLane}")
    A(f"v_add_u32 v12, s{sT1}, v11")
    A("s_mov_b64 exec, 0xff")
    A(f"ds_write_b64 v12, v[{H}:{H+1}] offset:{L_Y2}")
    A("s_waitcnt lgkmcnt(0)")
    A("s_barrier")
    A(f"s_cmp_lg_u32 s{sW}, 0")
    A("s_cbranch_scc1 L_fin")
    for w in range(4):
        A(f"ds_read_b64 v[{H+8+2*w}:{H+9+2*w}], v11 offset:{L_Y2+64*w}")
    A("s_waitcnt lgkmcnt(0)")
    A(f"v_add_f32 v{H+8}, v{H+8}, v{H+10}"); A(f"v_add_f32 v{H+9}, v{H+9}, v{H+11}")
    A(f"v_add_f32 v{H+12}, v{H+12}, v{H+14}"); A(f"v_add_f32 v{H+13}, v{H+13}, v{H+15}")
    A(f"v_add_f32 v{H+8}, v{H+8}, v{H+12}"); A(f"v_add_f32 v{H+9}, v{H+9}, v{H+13}")
    A(f"v_cvt_pk_bf16_f32 v{H+8}, v{H+8}, v{H+9}")
    A(f"s_lshl_b32 s{sT1}, s2, 5")
    A(f"v_lshlrev_b32 v11, 2, v{vLane}")
    A(f"buffer_store_dword v{H+8}, v11, {sr(OUT_)}, s{sT1} offen")
    A.lab("L_fin")
    if stamps:
        A("s_mov_b64 exec, -1")
        A(f"s_memrealtime s[{sTs+6}:{sTs+7}]")
        A("s_waitcnt lgkmcnt(0)")
        rec_store(sTs, 8, DBG_OFF, 5)
        A("s_mov_b32 s40, s41"); A("s_mov_b32 s41, 0")
        rec_store(32, 8, DBG_OFF + 0x60000, 6)
        A("s_mov_b32 s32, s40"); A("s_mov_b32 s33, 0"); A("s_mov_b32 s34, s42"); A("s_mov_b32 s35, 0")
        for k in range(4): A(f"s_mov_b32 s{36+k}, s{28+k}")
        rec_store(32, 8, DBG_OFF + 0x60000 + 32, 6)
    A.lab("L_end")
    A("s_endpgm")

    out = [HEADER.rstrip("\n"),
           "; Override launch geometry by editing the next line (default: block=256,",
           "; grid=ceil(out_elems/256), lds=0). Harness parses it; keep it on one line.",
           f"; @launch grid=(256,1,1) block=(512,1,1) lds={LDS_BYTES}",
           '.amdgcn_target "amdgcn-amd-amdhsa--gfx950"', ".text", f".globl {KNAME}", ".p2align 8",
           f".type {KNAME},@function", f"{KNAME}:"]
    out += [l for l in A.L if l is not None]
    out += ['.section .rodata,"a"', ".p2align 6", f".amdhsa_kernel {KNAME}",
            "  .amdhsa_next_free_vgpr 256", "  .amdhsa_next_free_sgpr 102", "  .amdhsa_accum_offset 256",
            "  .amdhsa_group_segment_fixed_size 0", "  .amdhsa_kernarg_size 112", "  .amdhsa_user_sgpr_count 2",
            "  .amdhsa_user_sgpr_kernarg_segment_ptr 1", "  .amdhsa_system_sgpr_workgroup_id_x 1", ".end_amdhsa_kernel"]
    return "\n".join(out) + "\n"

if __name__ == "__main__":
    ap = argparse.ArgumentParser()
    ap.add_argument("-o", default="gated_mix__gqa_block_cached__gqa_block_cached__decode.s")
    ap.add_argument("--static", action="store_true")
    ap.add_argument("--stamps", action="store_true")
    ap.add_argument("--nt", default="nt")
    ap.add_argument("--opt", default="")
    a = ap.parse_args()
    open(a.o, "w").write(gen(dynamic=not a.static, stamps=a.stamps, nt=a.nt, opt=eval("dict(%s)" % a.opt)))
    print("wrote", a.o)
```

```python
import sys, argparse, struct

KNAME = "gated_mix__gqa_block_cached__gqa_block_cached__decode_kernel"
HEADER = open("gated_mix__gqa_block_cached__gqa_block_cached__decode.s.ref").read().split("; Override launch")[0]

QBUF_OFF = 0x0
CNT_OFF  = 0x14000
H2_OFF   = 0x20000
H2_PSTRIDE = 2176
H3_OFF   = 0x200000
H3_PSTRIDE = 3584
DBG_OFF  = 0x400000
WS_BYTES = 0x800000
NRED = 56

L_QP  = 0
L_QF  = 4096
L_ML  = L_QF + 1024
L_GATE = L_ML + 128
L_FLAG = L_GATE + 16
L_Y2  = L_GATE + 64
L_ACC = 6144
L_Y   = L_ACC
LDS_BYTES = 96 * 1024

C_SCALE = 1.4426950408889634 / 16.0
def f2u(f): return struct.unpack("<I", struct.pack("<f", f))[0]

class G:
    def __init__(s): s.L = []
    def __call__(s, t): s.L.append("    " + t)
    def lab(s, t): s.L.append(t + ":")
    def c(s, t): s.L.append("    ; " + t)

def vr(a, n=4): return f"v[{a}:{a+n-1}]"
def sr(a, n=4): return f"s[{a}:{a+n-1}]"
DPPM = "row_mask:0xf bank_mask:0xf"
RED8 = ("quad_perm:[1,0,3,2]", "quad_perm:[2,3,0,1]", "row_half_mirror")

def gen(stamps=False, nt="nt", maxspin=400000, opt=None):
    opt = opt or {}
    NS = opt.get("ns", 32)
    A = G()
    sG, sJ, sB, sSP, sBR, sKVH, sW = 3, 4, 5, 6, 7, 8, 9
    sO, sO2 = 10, 11
    sBase = 12
    sT0, sT1, sT2 = 14, 15, 88
    K_, V_, WQ_, WO_, WS_, X_, GW_, OUT_, DB_ = 44, 48, 52, 56, 60, 64, 68, 72, 76
    sSelLo, sSelHi, sC = 80, 81, 82
    sM2 = 84
    sA0, sA1 = 86, 87
    sSpin = 89
    sEx = 90
    sTs = 92
    sNon = 101
    sCons = 13
    sTt = 10
    sTC = 83
    sRot = 100
    vLane, vR, vGq, vKoff, vVoff, vM, vLs, vMsk = 2, 3, 4, 5, 6, 8, 9, 10
    RING = 16
    F = 144
    D = F
    ACC = 176
    QB = 208
    SA = 216
    TT = 248
    TL = SA
    PX = ACC
    AF = QB
    KA, H, WR, RG = RING, RING + 32, RING + 64, RING

    def tst(k):
        if stamps:
            A(f"s_memrealtime s[{32+2*k}:{33+2*k}]"); A("s_waitcnt lgkmcnt(0)")
    def xst(k):
        if stamps:
            A(f"s_memrealtime s[{16+2*k}:{17+2*k}]"); A("s_waitcnt lgkmcnt(0)")
    def rec_store(first_sgpr, n, off, lg, tmp, wait=True):
        A("s_mov_b64 exec, 1")
        A(f"s_lshl_b32 s{sT1}, s2, 3"); A(f"s_add_u32 s{sT1}, s{sT1}, s{sW}")
        A(f"s_lshl_b32 s{sT1}, s{sT1}, {lg}"); A(f"s_add_u32 s{sT1}, s{sT1}, {off}")
        for k in range(n): A(f"v_mov_b32 v{tmp+k}, s{first_sgpr+k}")
        for k in range(0, n, 4):
            A(f"buffer_store_dwordx4 v[{tmp+k}:{tmp+k+3}], off, {sr(WS_)}, s{sT1} offset:{4*k}")
        if wait: A("s_waitcnt vmcnt(0)")
        A("s_mov_b64 exec, -1")

    A.c("entry")
    A("s_cmp_ge_u32 s2, 256")
    A("s_cbranch_scc1 L_end")
    A(f"s_memrealtime s[{sTs}:{sTs+1}]")
    A("s_load_dwordx16 s[16:31], s[0:1], 0")
    A("s_load_dwordx8 s[32:39], s[0:1], 64")
    A("s_load_dwordx4 s[40:43], s[0:1], 96")
    A("v_lshrrev_b32 v1, 6, v0")
    A(f"v_and_b32 v{vLane}, 63, v0")
    A(f"v_readfirstlane_b32 s{sW}, v1")
    A(f"s_and_b32 s{sKVH}, s2, 7")
    A(f"s_bfe_u32 s{sB}, s2, 0x10003")
    A(f"s_bfe_u32 s{sBR}, s2, 0x10004")
    A(f"s_lshr_b32 s{sSP}, s2, 5")
    A(f"s_lshl_b32 s{sG}, s{sBR}, 3")
    A(f"s_add_u32 s{sG}, s{sG}, s{sKVH}")
    A(f"s_lshl_b32 s{sJ}, s{sB}, 3")
    A(f"s_add_u32 s{sJ}, s{sJ}, s{sSP}")
    A(f"v_and_b32 v{vR}, 15, v{vLane}")
    A(f"v_lshrrev_b32 v{vGq}, 4, v{vLane}")
    A(f"v_lshrrev_b32 v11, 2, v{vR}")
    A(f"v_lshlrev_b32 v11, 9, v11")
    A(f"v_and_b32 v12, 3, v{vR}")
    A(f"v_lshlrev_b32 v12, 4, v12")
    A(f"v_lshlrev_b32 v13, 6, v{vGq}")
    A(f"v_add3_u32 v{vKoff}, v11, v12, v13")
    A(f"v_lshlrev_b32 v11, 9, v{vGq}")
    A(f"v_lshlrev_b32 v12, 4, v{vR}")
    A(f"v_add_u32 v{vVoff}, v11, v12")
    A(f"s_mov_b32 s{sSelLo}, 0x05040100")
    A(f"s_mov_b32 s{sSelHi}, 0x07060302")
    A(f"s_mov_b32 s{sC}, {f2u(C_SCALE):#x}")
    A(f"s_mov_b32 s{sTC}, 0x9E3779B9")
    A(f"s_mov_b32 s{sM2}, 0x00030003")
    A(f"s_mov_b32 s{sM2+1}, 0x00030003")
    A(f"v_cndmask_b32 v{vMsk}, 0, -1, s[{sM2}:{sM2+1}]")
    A(f"s_mul_i32 s{sRot}, s2, {opt.get('wrot', 0)}")
    A(f"s_add_u32 s{sRot}, s{sRot}, s{sW}")
    A(f"s_lshl_b32 s{sBase}, s{sSP}, 19")
    A(f"s_lshl_b32 s{sT1}, s{sB}, 3")
    A(f"s_add_u32 s{sT1}, s{sT1}, s{sKVH}")
    A(f"s_lshl_b32 s{sT1}, s{sT1}, 22")
    A("s_waitcnt lgkmcnt(0)")
    A(f"s_cmp_eq_u32 s{sBR}, 0")
    for (srd, a, b_) in ((WQ_, 22, 32), (K_, 18, 28), (V_, 20, 30), (WO_, 24, 34)):
        A(f"s_cselect_b32 s{srd}, s{a}, s{b_}")
        A(f"s_cselect_b32 s{srd+1}, s{a+1}, s{b_+1}")
    for srd in (K_, V_):
        A(f"s_add_u32 s{srd}, s{srd}, s{sT1}")
        A(f"s_addc_u32 s{srd+1}, s{srd+1}, 0")
        A(f"s_mov_b32 s{srd+2}, 0x400000")
        A(f"s_mov_b32 s{srd+3}, 0x20000")
    for srd in (WQ_, WO_):
        A(f"s_mov_b32 s{srd+2}, {448*4096*2}")
        A(f"s_mov_b32 s{srd+3}, 0x20000")
    for (srd, a, n) in ((WS_, 42, WS_BYTES), (X_, 16, 1792), (GW_, 36, 896), (OUT_, 38, 1792), (DB_, 40, 256)):
        A(f"s_mov_b32 s{srd}, s{a}")
        A(f"s_mov_b32 s{srd+1}, s{a+1}")
        A(f"s_mov_b32 s{srd+2}, {n}")
        A(f"s_mov_b32 s{srd+3}, 0x20000")

    def tile_off(n):
        A(f"s_add_u32 s{sO}, s{sRot}, {8*n}")
        A(f"s_and_b32 s{sO}, s{sO}, 63")
        A(f"s_lshl_b32 s{sO}, s{sO}, 13")
        A(f"s_add_u32 s{sO}, s{sO}, s{sBase}")
        A(f"s_add_u32 s{sO2}, s{sO}, 4096")
    def slot(i): return RING + 4 * (i % NS)
    def issue(i):
        if i >= 128: return
        j = i & 7
        if j == 0: tile_off((i >> 3) & 7)
        if i < 64:
            g_, hf = j >> 1, j & 1
            so = sO if g_ < 2 else sO2
            A(f"buffer_load_dwordx4 {vr(slot(i))}, v{vKoff}, {sr(K_)}, s{so} offen offset:{(g_&1)*2048+hf*256} {nt}")
        else:
            hf, jp = j >> 2, j & 3
            so = sO if jp < 2 else sO2
            A(f"buffer_load_dwordx4 {vr(slot(i))}, v{vVoff}, {sr(V_)}, s{so} offen offset:{(jp&1)*2048+hf*256} {nt}")
    def prefetch(lo, hi):
        for i in range(lo, hi): issue(i)
    def wo_perm():
        for i in range(4):
            for d in range(4):
                A(f"v_perm_b32 v{KA+4*(2*d)+i}, v{WR+4*(2*i+1)+d}, v{WR+4*(2*i)+d}, s{sSelLo}")
                A(f"v_perm_b32 v{KA+4*(2*d+1)+i}, v{WR+4*(2*i+1)+d}, v{WR+4*(2*i)+d}, s{sSelHi}")
    def allreduce_add(regs, tmp, ctls):
        for ctl in ctls:
            for r_ in regs:
                A(f"v_add_f32_dpp v{r_}, v{r_}, v{r_} {ctl} {DPPM}")
            A("s_nop 1")
        for sw in ("v_permlane16_swap_b32", "v_permlane32_swap_b32"):
            for r_, t_ in zip(regs, tmp): A(f"v_mov_b32 v{t_}, v{r_}")
            A("s_nop 1")
            for r_, t_ in zip(regs, tmp): A(f"{sw} v{r_}, v{t_}")
            A("s_nop 1")
            for r_, t_ in zip(regs, tmp): A(f"v_add_f32 v{r_}, v{r_}, v{t_}")
            A("s_nop 1")

    def tag_check(r, npairs, acc, tmp):
        for k in range(npairs):
            ta, tb = r + 4*k + 1, r + 4*k + 3
            A(f"v_xor_b32 v{tmp}, v{ta}, v{tb}")
            A(f"v_xor_b32 v{tmp}, s{sTC}, v{tmp}")
            A(f"v_subrev_u32 v{ta}, s{sNon}, v{ta}")
            A(f"v_lshrrev_b32 v{ta}, 24, v{ta}")
            if k == 0: A(f"v_or_b32 v{acc}, v{tmp}, v{ta}")
            else: A(f"v_or3_b32 v{acc}, v{acc}, v{tmp}, v{ta}")
        A(f"v_cmp_ne_u32 vcc, 0, v{acc}")
    E1 = opt.get("e1", 16)
    if opt.get("cpf"):
        A(f"s_cmp_lg_u32 s{sW}, {opt.get('cpfw', 7)}")
        A("s_cbranch_scc1 L_nocpf")
        A("s_getpc_b64 s[40:41]")
        A("L_pc0:".replace(":", "") and "s_nop 0")
        A(f"s_sub_u32 s40, s40, CPF_DELTA")
        A("s_subb_u32 s41, s41, 0")
        A(f"v_lshlrev_b32 v11, 4, v{vLane}")
        for k in range(opt["cpf"]):
            A(f"global_load_dwordx4 v[{ACC+4*(k%8)}:{ACC+4*(k%8)+3}], v11, s[40:41]")
            A("v_add_u32 v11, 1024, v11")
        A("s_waitcnt vmcnt(0)") if opt.get("cpfwait") else None
        A.lab("L_nocpf")
    if opt.get("pure"):
        prefetch(0, NS)
        A("s_branch L_main")
    A(f"s_cmp_eq_u32 s{sW}, 0")
    A("s_cbranch_scc1 L_helper")
    A(f"s_cmp_lt_u32 s{sW}, %d" % (1 if opt.get("nowq") else 5))
    A("s_cbranch_scc1 L_qproj")
    A("s_barrier")
    prefetch(0, E1)
    A("s_barrier")
    if opt.get("stage"): A("s_barrier")
    prefetch(E1, NS)
    A("s_branch L_qwait")
    A.lab("L_qproj")
    A.c("---- waves 1..4: q-proj partial (128 rows each)")
    A(f"s_sub_u32 s{sT0}, s{sW}, 1")
    A(f"v_lshrrev_b32 v11, 2, v{vLane}")
    A(f"v_and_b32 v12, 3, v{vLane}")
    A(f"s_lshl_b32 s{sT1}, s{sT0}, 7")
    A(f"v_lshlrev_b32 v11, 3, v11")
    A(f"v_add_u32 v11, s{sT1}, v11")
    A(f"v_lshlrev_b32 v13, 1, v11")
    A(f"v_lshlrev_b32 v11, 13, v11")
    A(f"v_lshlrev_b32 v12, 4, v12")
    A(f"v_add_u32 v14, v11, v12")
    A(f"s_lshl_b32 s{sT1}, s{sKVH}, 10")
    A(f"s_lshl_b32 s{sT2}, s{sJ}, 6")
    A(f"s_add_u32 s{sT1}, s{sT1}, s{sT2}")
    QW = RING
    wqnt = nt if opt.get("wqnt", 1) else opt.get("wqpol", "")
    for jj in range(8):
        A(f"buffer_load_dwordx4 {vr(QW+4*jj)}, v14, {sr(WQ_)}, s{sT1} offen {wqnt}")
        if jj < 7: A(f"s_add_u32 s{sT1}, s{sT1}, 8192")
    A(f"buffer_load_dwordx4 {vr(PX)}, v13, {sr(X_)}, 0 offen")
    A(f"buffer_load_dwordx4 {vr(PX+4)}, v13, {sr(X_)}, 0 offen offset:896")
    A("s_barrier")
    QA = F
    for k in range(16): A(f"v_mov_b32 v{QA+k}, 0")
    A("s_waitcnt vmcnt(0)")
    xst(0)
    for a in range(4):
        for d in range(4):
            A(f"v_perm_b32 v{TT+2*d}, v{QW+4*(2*a+1)+d}, v{QW+4*(2*a)+d}, s{sSelLo}")
            A(f"v_perm_b32 v{TT+2*d+1}, v{QW+4*(2*a+1)+d}, v{QW+4*(2*a)+d}, s{sSelHi}")
        for b_ in range(2):
            for cc in range(8):
                A(f"v_dot2_f32_bf16 v{QA+8*b_+cc}, v{TT+cc}, v{PX+4*b_+a}, v{QA+8*b_+cc}")
    A("s_nop 3")
    for ctl in ("row_ror:4", "row_ror:8"):
        for k in range(16):
            A(f"v_add_f32_dpp v{QA+k}, v{QA+k}, v{QA+k} {ctl} {DPPM}")
    A("s_nop 1")
    for k in range(0, 16, 2):
        A(f"v_permlane16_swap_b32 v{QA+k}, v{QA+k+1}")
    A("s_nop 1")
    for k in range(0, 16, 2):
        A(f"v_add_f32 v{QA+k}, v{QA+k}, v{QA+k+1}")
    A("s_nop 1")
    for k in range(0, 16, 4):
        A(f"v_permlane32_swap_b32 v{QA+k}, v{QA+k+2}")
    A("s_nop 1")
    for k in range(0, 16, 4):
        A(f"v_add_f32 v{QA+k}, v{QA+k}, v{QA+k+2}")
    A(f"s_lshl_b32 s{sT2}, s{sT0}, 10")
    A(f"v_lshlrev_b32 v11, 2, v{vLane}")
    A(f"v_add_u32 v11, s{sT2}, v11")
    for k in range(4):
        A(f"ds_write_b32 v11, v{QA+4*k} offset:{L_QP+256*k}")
    A("s_waitcnt lgkmcnt(0)")
    xst(1)
    A("s_barrier")
    xst(2)
    if opt.get("stage"): A("s_barrier")
    prefetch(0, NS)
    A.lab("L_qwait")
    xst(3)
    A(f"v_mov_b32 v11, {L_FLAG}")
    A.lab("L_qspin")
    A("ds_read_b32 v12, v11")
    A("s_waitcnt lgkmcnt(0)")
    A(f"v_readfirstlane_b32 s{sT1}, v12")
    A(f"s_cmp_lg_u32 s{sT1}, 0")
    A("s_cbranch_scc1 L_main")
    A("s_sleep 1")
    A("s_branch L_qspin")

    A.lab("L_helper")
    A.c("---- wave 0: nonce, gate, q reduce/publish/poll")
    PW = F + 16
    vGN = TL + 16
    A(f"v_lshlrev_b32 v11, 4, v{vLane}")
    A(f"buffer_load_dwordx4 {vr(PX)}, v11, {sr(X_)}, 0 offen")
    A(f"buffer_load_dwordx4 {vr(PX+4)}, v11, {sr(X_)}, 0 offen offset:896")
    A(f"buffer_load_dwordx4 {vr(PW)}, v11, {sr(GW_)}, 0 offen")
    A(f"v_mov_b32 v12, {L_FLAG}")
    A("v_mov_b32 v13, %d" % (1 if opt.get("noq") else 0))
    A("ds_write_b32 v12, v13")
    A("s_waitcnt lgkmcnt(0)")
    A("s_barrier")
    A("s_waitcnt vmcnt(0)")
    xst(0)
    A("v_mov_b32 v12, 0"); A("v_mov_b32 v13, 0")
    for d in range(4):
        A(f"v_dot2_f32_bf16 v12, v{PX+d}, v{PW+d}, v12")
        A(f"v_dot2_f32_bf16 v13, v{PX+4+d}, v{PW+d}, v13")
    A("s_nop 3")
    allreduce_add([12, 13], [14, 15], list(RED8) + ["row_mirror"])
    A(f"s_mov_b32 s{sT1}, {f2u(-1.4426950408889634):#x}")
    A(f"s_mov_b32 s{sT2}, {f2u(1.4426950408889634):#x}")
    A(f"s_cmp_eq_u32 s{sBR}, 0")
    A(f"s_cselect_b32 s{sT1}, s{sT1}, s{sT2}")
    A(f"v_mul_f32 v12, s{sT1}, v12"); A(f"v_mul_f32 v13, s{sT1}, v13")
    A("v_exp_f32 v12, v12"); A("v_exp_f32 v13, v13")
    A("s_nop 0")
    A("v_add_f32 v12, 1.0, v12"); A("v_add_f32 v13, 1.0, v13")
    A("v_rcp_f32 v12, v12"); A("v_rcp_f32 v13, v13")
    A(f"v_mov_b32 v11, {L_GATE}")
    A("ds_write_b64 v11, v[12:13]")
    A(f"v_lshrrev_b32 v11, 5, v{vLane}")
    A(f"v_lshlrev_b32 v11, 9, v11")
    A(f"v_bfe_u32 v12, v{vLane}, 2, 1")
    A(f"v_lshlrev_b32 v12, 8, v12")
    A(f"v_and_b32 v13, 3, v{vLane}")
    A(f"v_lshlrev_b32 v13, 6, v13")
    A(f"v_add3_u32 v11, v11, v12, v13")
    A(f"v_bfe_u32 v12, v{vLane}, 3, 2")
    A(f"v_lshlrev_b32 v12, 2, v12")
    A(f"v_add_u32 v11, v11, v12")
    A(f"v_lshrrev_b32 v14, 5, v{vLane}")
    A(f"v_lshlrev_b32 v14, 11, v14")
    A(f"v_and_b32 v12, 31, v{vLane}")
    A(f"v_lshlrev_b32 v12, 2, v12")
    A(f"v_add_u32 v14, v14, v12")
    A(f"v_lshlrev_b32 v15, 5, v{vLane}")
    A(f"s_lshl_b32 s{sT1}, s{sG}, 12")
    A(f"s_lshl_b32 s{sT2}, s{sJ}, 7")
    A(f"s_add_u32 s{sT1}, s{sT1}, s{sT2}")
    A(f"s_lshl_b32 s{sT0}, s{sG}, 12")
    A(f"s_lshl_b32 s{sT2}, s{sB}, 11")
    A(f"s_add_u32 s{sT0}, s{sT0}, s{sT2}")
    A(f"s_mov_b32 s{sEx}, 0x55555555"); A(f"s_mov_b32 s{sEx+1}, 0x55555555")
    A(f"v_bfe_u32 v12, v{vLane}, 1, 1")
    A(f"v_mul_lo_u32 v12, v12, s{sTC}")
    A(f"v_xor_b32 v{TL+5}, s{sTs}, v12")
    A(f"s_sub_u32 s{sNon}, s{sTs}, 2000")
    A("s_waitcnt lgkmcnt(0)")
    xst(1)
    A("s_barrier")
    xst(2)
    for k in range(4):
        A(f"ds_read_b32 v{TL+k}, v11 offset:{L_QP+1024*k}")
    A("s_waitcnt lgkmcnt(0)")
    A(f"v_add_f32 v{TL}, v{TL}, v{TL+1}")
    A(f"v_add_f32 v{TL+2}, v{TL+2}, v{TL+3}")
    A(f"v_add_f32 v{TL}, v{TL}, v{TL+2}")
    A("s_nop 1")
    A(f"v_mov_b32_dpp v{TL+1}, v{TL} quad_perm:[1,1,3,3] {DPPM}")
    A("s_nop 0")
    A(f"v_cvt_pk_bf16_f32 v{TL+4}, v{TL}, v{TL+1}")
    A(f"s_mov_b64 exec, s[{sEx}:{sEx+1}]")
    A(f"buffer_store_dwordx2 {vr(TL+4,2)}, v14, {sr(WS_)}, s{sT1} offen offset:{QBUF_OFF} sc1")
    A("s_mov_b64 exec, -1")
    xst(3)
    def qpoll(r):
        A(f"buffer_load_dwordx4 {vr(r)}, v15, {sr(WS_)}, s{sT0} offen offset:{QBUF_OFF} sc1")
        A(f"buffer_load_dwordx4 {vr(r+4)}, v15, {sr(WS_)}, s{sT0} offen offset:{QBUF_OFF+16} sc1")
    def qcheck(r, lab):
        tag_check(r, 2, 11, 12)
        A(f"s_cbranch_vccz {lab}")
    PB, PC = F, F + 8
    if opt.get("noq"): A("s_branch L_qgot")
    q1, q2 = opt.get("q1", 8), opt.get("q2", 16)
    if q1: A(f"s_sleep {q1}")
    qpoll(QB)
    if opt.get("stage") == 1: A("s_barrier")
    A(f"s_sleep {q2}")
    qpoll(PB)
    if opt.get("stage") == 2: A("s_barrier")
    A(f"s_sleep {q2}")
    qpoll(PC)
    A("s_waitcnt vmcnt(4)"); qcheck(QB, "L_qgot")
    A("s_waitcnt vmcnt(2)"); qcheck(PB, "L_qgotB")
    A("s_waitcnt vmcnt(0)"); qcheck(PC, "L_qgotC")
    A(f"s_mov_b32 s{sSpin}, 0")
    A.lab("L_qpoll")
    qpoll(QB)
    A("s_waitcnt vmcnt(0)"); qcheck(QB, "L_qgot")
    A(f"s_add_u32 s{sSpin}, s{sSpin}, 1")
    A(f"s_cmp_lt_u32 s{sSpin}, {maxspin}")
    A("s_cbranch_scc1 L_qpoll")
    A("s_branch L_qgot")
    A.lab("L_qgotB")
    for k in range(8): A(f"v_mov_b32 v{QB+k}, v{PB+k}")
    A("s_branch L_qgot")
    A.lab("L_qgotC")
    for k in range(8): A(f"v_mov_b32 v{QB+k}, v{PC+k}")
    A.lab("L_qgot")
    xst(4)
    A(f"v_mov_b32 v{QB+1}, v{QB+2}")
    A(f"v_mov_b32 v{QB+2}, v{QB+4}")
    A(f"v_mov_b32 v{QB+3}, v{QB+6}")
    A(f"v_lshlrev_b32 v11, 4, v{vLane}")
    A(f"ds_write_b128 v11, {vr(QB)} offset:{L_QF}")
    A(f"v_mov_b32 v11, {L_GATE}")
    A("v_mov_b32 v13, 1")
    A("s_waitcnt lgkmcnt(0)")
    A(f"ds_write_b32 v11, v13 offset:{L_FLAG-L_GATE}")
    A("s_waitcnt vmcnt(0)")
    prefetch(0, NS)
    xst(5)

    A.lab("L_main")
    nst = 0
    if stamps == 1:
        rec_store(16, 12, DBG_OFF + 0x20000, 6, TL, wait=False); nst = 3
    A(f"v_and_b32 v11, 1, v{vR}")
    A(f"v_lshlrev_b32 v11, 9, v11")
    A(f"v_bfe_u32 v12, v{vR}, 1, 2")
    A(f"v_lshlrev_b32 v12, 4, v12")
    A(f"v_lshlrev_b32 v13, 6, v{vGq}")
    A(f"v_add3_u32 v11, v11, v12, v13")
    A(f"ds_read_b128 {vr(QB)}, v11 offset:{L_QF}")
    A(f"ds_read_b128 {vr(QB+4)}, v11 offset:{L_QF+256}")
    for k in range(32): A(f"v_mov_b32 v{ACC+k}, 0")
    A("s_waitcnt lgkmcnt(0)")
    if stamps:
        A(f"s_memrealtime s[{sTs+2}:{sTs+3}]")
    nocomp = opt.get("nocomp")
    log = list(range(NS)) + ["x"] * nst
    def wait_for(i):
        k = log.index(i)
        A(f"s_waitcnt vmcnt({min(63, len(log) - 1 - k)})")
    nxt = NS
    def issue_next():
        nonlocal nxt
        if nxt < 128:
            issue(nxt); log.append(nxt); nxt += 1
    for n in range(8):
        for j in range(8):
            i = 8 * n + j
            g_, hf = j >> 1, j & 1
            wait_for(i)
            c_ = "0" if hf == 0 else vr(D+4*g_)
            if not nocomp:
                A(f"v_mfma_f32_16x16x32_bf16 {vr(D+4*g_)}, {vr(slot(i))}, {vr(QB+4*hf)}, {c_}")
            issue_next()
        if stamps and n in (1, 3, 7): A(f"s_memrealtime s[{16+2*{1:0,3:1,7:2}[n]}:{17+2*{1:0,3:1,7:2}[n]}]")
        if nocomp: continue
        Sn = SA + 4 * n
        for g_ in range(3):
            A(f"v_add_f32_dpp v{TT+2*g_}, v{D+4*g_+1}, v{D+4*g_+0} row_shl:2 {DPPM} bound_ctrl:0")
            A(f"v_add_f32_dpp v{TT+2*g_+1}, v{D+4*g_+3}, v{D+4*g_+2} row_shl:2 {DPPM} bound_ctrl:0")
        A("s_nop 3")
        A(f"v_add_f32_dpp v{TT+6}, v{D+13}, v{D+12} row_shl:2 {DPPM} bound_ctrl:0")
        A(f"v_add_f32_dpp v{TT+7}, v{D+15}, v{D+14} row_shl:2 {DPPM} bound_ctrl:0")
        for g_ in range(3):
            A(f"v_add_f32_dpp v{Sn+g_}, v{TT+2*g_+1}, v{TT+2*g_} row_shl:4 {DPPM} bound_ctrl:0")
        A(f"v_add_f32_dpp v{Sn+3}, v{TT+7}, v{TT+6} row_shl:4 {DPPM} bound_ctrl:0")
    if not nocomp:
        A(f"v_max3_f32 v11, v{SA}, v{SA+1}, v{SA+2}")
        A(f"v_max3_f32 v12, v{SA+3}, v{SA+4}, v{SA+5}")
        for k in range(6, 30, 4):
            A(f"v_max3_f32 v11, v11, v{SA+k}, v{SA+k+1}")
            A(f"v_max3_f32 v12, v12, v{SA+k+2}, v{SA+k+3}")
        A(f"v_max3_f32 v11, v11, v{SA+30}, v{SA+31}")
        A("v_max_f32 v11, v11, v12")
        A("v_mov_b32 v12, v11")
        A("s_nop 1")
        A("v_permlane32_swap_b32 v11, v12")
        A("s_nop 1")
        A("v_max_f32 v11, v11, v12")
        A("v_mov_b32 v12, v11")
        A("s_nop 1")
        A("v_permlane16_swap_b32 v11, v12")
        A("s_nop 1")
        A(f"v_max_f32 v{vM}, v11, v12")
        A(f"v_mul_f32 v12, s{sC}, v{vM}")
        for k in range(32):
            A(f"v_fma_f32 v{SA+k}, v{SA+k}, s{sC}, -v12")
        for k in range(32):
            A(f"v_exp_f32 v{SA+k}, v{SA+k}")
        A("s_nop 0")
        A(f"v_add_f32 v{vLs}, v{SA}, v{SA+1}")
        A(f"v_add_f32 v13, v{SA+2}, v{SA+3}")
        for k in range(4, 32, 2):
            r_ = vLs if (k >> 1) & 1 == 0 else 13
            A(f"v_add_f32 v11, v{SA+k}, v{SA+k+1}")
            A(f"v_add_f32 v{r_}, v{r_}, v11")
        A(f"v_add_f32 v{vLs}, v{vLs}, v13")
        for n in range(8):
            Sn = SA + 4 * n
            A(f"v_cvt_pk_bf16_f32 v{Sn}, v{Sn}, v{Sn+1}")
            A(f"v_cvt_pk_bf16_f32 v{Sn+1}, v{Sn+2}, v{Sn+3}")
        for n in range(8):
            Sn = SA + 4 * n
            A(f"v_and_b32 v{Sn}, v{Sn}, v{vMsk}")
            A(f"v_and_b32 v{Sn+1}, v{Sn+1}, v{vMsk}")
        for n in range(8):
            Sn = SA + 4 * n
            A(f"v_mov_b32_dpp v{Sn+2}, v{Sn} row_shr:2 {DPPM} bound_ctrl:0")
            A(f"v_mov_b32_dpp v{Sn+3}, v{Sn+1} row_shr:2 {DPPM} bound_ctrl:0")
    for n in range(8):
        for i2 in range(4):
            i = 64 + 8 * n + 2 * i2
            wait_for(i + 1)
            a_, b_ = slot(i), slot(i + 1)
            for d in range(4 if not nocomp else 0):
                A(f"v_perm_b32 v{F+4*(2*d)+i2}, v{b_+d}, v{a_+d}, s{sSelLo}")
                A(f"v_perm_b32 v{F+4*(2*d+1)+i2}, v{b_+d}, v{a_+d}, s{sSelHi}")
            issue_next(); issue_next()
        if stamps and n in (1, 3, 5): A(f"s_memrealtime s[{16+2*{1:3,3:4,5:5}[n]}:{17+2*{1:3,3:4,5:5}[n]}]")
        if nocomp: continue
        A("s_nop 1")
        for e in range(8):
            A(f"v_mfma_f32_16x16x32_bf16 {vr(ACC+4*e)}, {vr(SA+4*n)}, {vr(F+4*e)}, {vr(ACC+4*e)}")
    A.c("---- wave finish")
    if stamps:
        A(f"s_memrealtime s[{sTs+4}:{sTs+5}]")
        A("s_waitcnt lgkmcnt(0)")
        if stamps == 1: rec_store(16, 12, DBG_OFF + 0xA0000, 6, RING, wait=False)
    if opt.get("notail"): A("s_branch L_fin")
    A(f"s_cmp_ge_u32 s{sW}, 4")
    A("s_cbranch_scc1 L_nowo")
    A(f"s_lshl_b32 s{sT1}, s{sKVH}, 9")
    A(f"s_lshl_b32 s{sT2}, s{sJ}, 5")
    A(f"s_add_u32 s{sT1}, s{sT1}, s{sT2}")
    A(f"s_mul_i32 s{sT1}, s{sT1}, 896")
    A(f"s_lshl_b32 s{sT2}, s{sW}, 8")
    A(f"s_add_u32 s{sT1}, s{sT1}, s{sT2}")
    A(f"v_mul_u32_u24 v11, {8*896}, v{vGq}")
    A(f"v_lshlrev_b32 v12, 4, v{vR}")
    A(f"v_add_u32 v15, v11, v12")
    for jj in range(8):
        A(f"buffer_load_dwordx4 {vr(WR+4*jj)}, v15, {sr(WO_)}, s{sT1} offen {nt}")
        if jj < 7: A(f"s_add_u32 s{sT1}, s{sT1}, 896")
    A.lab("L_nowo")
    if opt.get("tailcut") == 1: A("s_waitcnt vmcnt(0)"); A("s_branch L_fin")
    GT = TT + 4
    A(f"v_mov_b32 v13, {L_GATE}")
    A(f"s_memrealtime s[{sTt}:{sTt+1}]")
    A(f"v_mov_b32 v12, v{vLs}")
    A("s_nop 1")
    A(f"v_permlane32_swap_b32 v{vLs}, v12")
    A("s_nop 1")
    A(f"v_add_f32 v{vLs}, v{vLs}, v12")
    A(f"v_mov_b32 v12, v{vLs}")
    A("s_nop 1")
    A(f"v_permlane16_swap_b32 v{vLs}, v12")
    A("s_nop 1")
    A(f"v_add_f32 v{vLs}, v{vLs}, v12")
    A(f"s_lshl_b32 s{sT1}, s{sW}, 4")
    A(f"v_lshlrev_b32 v11, 3, v{vLane}")
    A(f"v_add_u32 v11, s{sT1}, v11")
    A(f"s_lshl_b32 s{sT1}, s{sW}, 11")
    A(f"v_lshlrev_b32 v12, 7, v{vLane}")
    A(f"v_add_u32 v12, s{sT1}, v12")
    A("s_mov_b64 exec, 3")
    A(f"ds_write_b64 v11, v[{vM}:{vLs}] offset:{L_ML}")
    A("s_mov_b64 exec, 0xffff")
    for e in range(8):
        A(f"ds_write_b128 v12, {vr(ACC+4*e)} offset:{L_ACC+16*e}")
    A("s_mov_b64 exec, -1")
    A("s_waitcnt lgkmcnt(0)")
    A(f"s_mov_b32 s{sNon}, s{sTs}")
    A(f"s_xor_b32 s{sTt+1}, s{sTt}, s{sTC}")
    A("s_barrier")
    A(f"ds_read_b64 v[{GT}:{GT+1}], v13")
    tst(0)
    A(f"s_cmp_lt_u32 s{sW}, 4")
    A("s_cbranch_scc1 L_h2")
    A(f"s_cmp_gt_u32 s{sW}, 5")
    A("s_cbranch_scc1 L_fin")
    A.c("---- merge: waves 4,5")
    A(f"v_and_b32 v11, 7, v{vLane}")
    A(f"v_lshlrev_b32 v11, 4, v11")
    A(f"v_bfe_u32 v12, v{vLane}, 3, 1")
    A(f"v_lshlrev_b32 v12, 3, v12")
    A("v_add_u32 v11, v11, v12")
    A(f"ds_read_b64 v[14:15], v11 offset:{L_ML}")
    A(f"s_sub_u32 s{sT1}, s{sW}, 4")
    A(f"s_lshl_b32 s{sT1}, s{sT1}, 10")
    A(f"v_lshlrev_b32 v13, 4, v{vLane}")
    A(f"v_add_u32 v13, s{sT1}, v13")
    for w in range(8):
        A(f"ds_read_b128 {vr(RG+4*w)}, v13 offset:{L_ACC+2048*w}")
    A(f"s_lshl_b32 s{sT2}, s{sG}, 4")
    A(f"s_add_u32 s{sT2}, s{sT2}, s{sJ}")
    A(f"s_mul_i32 s{sT2}, s{sT2}, {H2_PSTRIDE}")
    A(f"s_add_u32 s{sT2}, s{sT2}, {H2_OFF}")
    A(f"s_lshr_b32 s{sT1}, s{sT1}, 2")
    A(f"s_add_u32 s{sT1}, s{sT1}, s{sT2}")
    A(f"s_mov_b32 s{sCons}, s{sT2}")
    A(f"v_lshlrev_b32 v13, 2, v{vLane}")
    A(f"s_mov_b32 s{sEx}, 0x55555555"); A(f"s_mov_b32 s{sEx+1}, 0x55555555")
    A("s_waitcnt lgkmcnt(8)")
    A("v_mov_b32 v11, v14")
    A("s_nop 1")
    for ctl in RED8:
        A(f"v_max_f32_dpp v11, v11, v11 {ctl} {DPPM}")
        A("s_nop 1")
    A("v_sub_f32 v12, v14, v11")
    A(f"v_mul_f32 v12, s{sC}, v12")
    A("v_exp_f32 v12, v12")
    A("s_nop 0")
    A("v_mul_f32 v15, v15, v12")
    for k in range(16):
        A(f"v_readlane_b32 s{16+k}, v12, {k}")
    for ctl in RED8:
        A(f"v_add_f32_dpp v15, v15, v15 {ctl} {DPPM}")
        A("s_nop 1")
    A(f"v_bfe_u32 v10, v{vLane}, 1, 1")
    A(f"v_mul_lo_u32 v10, v10, s{sTC}")
    A(f"v_xor_b32 v10, s{sTt}, v10")
    for i in range(4): A(f"v_mov_b32 v{TL+2*i+1}, v10")
    A("s_waitcnt lgkmcnt(0)")
    for i in range(4):
        A(f"v_mul_f32 v{TL+2*i}, s{16+8*(i&1)}, v{RG+i}")
    for w in range(1, 8):
        for i in range(4):
            A(f"v_fma_f32 v{TL+2*i}, v{RG+4*w+i}, s{16+8*(i&1)+w}, v{TL+2*i}")
    A("s_nop 1")
    for i in range(4):
        A(f"v_mov_b32_dpp v{TL+8+i}, v{TL+2*i} quad_perm:[1,1,3,3] {DPPM}")
    for i in range(4):
        A(f"v_cvt_pk_bf16_f32 v{TL+2*i}, v{TL+2*i}, v{TL+8+i}")
    A(f"s_mov_b64 exec, s[{sEx}:{sEx+1}]")
    for i in range(4):
        half, h = i >> 1, i & 1
        A(f"buffer_store_dwordx2 {vr(TL+2*i,2)}, v13, {sr(WS_)}, s{sT1} offen offset:{(h*256+128*half)*4} sc1")
    A("s_mov_b64 exec, -1")
    if stamps:
        A("s_memrealtime s[30:31]"); A("s_waitcnt lgkmcnt(0)")
    A(f"s_cmp_lg_u32 s{sW}, 4")
    A("s_cbranch_scc1 L_fin")
    A(f"v_readlane_b32 s16, v11, 0"); A(f"v_readlane_b32 s17, v11, 8")
    A(f"v_readlane_b32 s18, v15, 0"); A(f"v_readlane_b32 s19, v15, 8")
    A(f"v_and_b32 v13, 1, v{vLane}")
    A("v_cmp_eq_u32 vcc, 0, v13")
    A(f"v_mov_b32 v{TL+8}, s17"); A(f"v_mov_b32 v{TL+10}, s19")
    A(f"v_mov_b32 v12, s16"); A(f"v_mov_b32 v14, s18")
    A(f"v_mov_b32 v{TL+9}, s{sTt}")
    A(f"v_mov_b32 v{TL+11}, s{sTt+1}")
    A(f"v_cndmask_b32 v{TL+8}, v{TL+8}, v12, vcc")
    A(f"v_cndmask_b32 v{TL+10}, v{TL+10}, v14, vcc")
    A(f"v_lshlrev_b32 v13, 4, v{vLane}")
    A("s_mov_b64 exec, 0xf")
    A(f"buffer_store_dwordx4 {vr(TL+8)}, v13, {sr(WS_)}, s{sCons} offen offset:2048 sc1")
    A("s_branch L_fin")
    A.lab("L_h2")
    if opt.get("tailcut") == 2: A("s_waitcnt vmcnt(0)"); A("s_branch L_fin")
    A.c("---- H2 consume: wave 0 polls; waves 0..3 project, tau = w")
    vRd, vYr, vH3, vYwB = TL+4, TL+5, TL+6, TL+7
    A(f"v_lshrrev_b32 v11, 1, v{vGq}")
    A(f"v_lshlrev_b32 v11, 9, v11")
    A(f"v_lshlrev_b32 v12, 5, v{vR}")
    A(f"s_lshl_b32 s{sT1}, s{sW}, 10")
    A(f"s_add_u32 s{sT2}, s{sT1}, {L_Y}")
    A(f"v_add3_u32 v{vYwB}, v11, v12, s{sT2}")
    A(f"v_lshlrev_b32 v11, 4, v{vLane}")
    A(f"v_add_u32 v{vYr}, s{sT2}, v11")
    A(f"v_lshrrev_b32 v11, 5, v{vLane}")
    A(f"v_mul_u32_u24 v11, {112*16}, v11")
    A(f"v_and_b32 v12, 31, v{vLane}")
    A(f"v_lshlrev_b32 v12, 4, v12")
    A(f"v_add_u32 v{vH3}, v11, v12")
    A(f"v_lshrrev_b32 v11, 2, v{vLane}")
    A(f"v_mul_u32_u24 v11, {H3_PSTRIDE}, v11")
    A(f"v_and_b32 v12, 3, v{vLane}")
    A(f"v_lshlrev_b32 v12, 4, v12")
    A(f"v_add_u32 v{vRd}, v11, v12")
    A(f"s_mov_b32 s{sA0}, 0x0000ffff"); A(f"s_mov_b32 s{sA1}, 0x0000ffff")
    A(f"s_cmp_eq_u32 s{sW}, 3")
    A(f"s_cselect_b32 s{sEx}, 0xffff, -1")
    A(f"s_cselect_b32 s{sEx+1}, 0xffff, -1")
    A(f"s_cmp_lg_u32 s{sW}, 0")
    A("s_cbranch_scc1 L_h2wait")
    A(f"s_mul_i32 s{sT1}, s{sG}, {16*H2_PSTRIDE}")
    A(f"s_add_u32 s{sT1}, s{sT1}, {H2_OFF}")
    A(f"s_lshl_b32 s{sT2}, s{sB}, 4")
    A(f"s_add_u32 s{sT2}, s{sT2}, s{sT1}")
    A(f"s_lshl_b32 s{sT0}, s{sJ}, 7")
    A(f"s_add_u32 s{sT1}, s{sT1}, s{sT0}")
    A(f"v_mul_u32_u24 v11, {H2_PSTRIDE}, v{vR}")
    A(f"v_lshlrev_b32 v12, 5, v{vGq}")
    A("v_add_u32 v12, v11, v12")
    A(f"s_mov_b32 s{sSpin}, 0")
    A("s_waitcnt vmcnt(0)")
    wo_perm()
    if stamps:
        A("s_memrealtime s[28:29]"); A("s_waitcnt lgkmcnt(0)")
    A.lab("L_h2poll")
    for k in range(2):
        A(f"buffer_load_dwordx4 {vr(F+4*k)}, v12, {sr(WS_)}, s{sT1} offen offset:{16*k} sc1")
    A(f"buffer_load_dwordx4 {vr(F+8)}, v11, {sr(WS_)}, s{sT2} offen offset:2048 sc1")
    A("s_waitcnt vmcnt(0)")
    tag_check(F, 3, 13, 14)
    A("s_cbranch_vccz L_h2got")
    if opt.get("sl2", 0): A(f"s_sleep {opt['sl2']}")
    A(f"s_add_u32 s{sSpin}, s{sSpin}, 1")
    A(f"s_cmp_lt_u32 s{sSpin}, {maxspin}")
    A("s_cbranch_scc1 L_h2poll")
    A.lab("L_h2got")
    tst(1)
    if stamps: A(f"s_mov_b32 s41, s{sSpin}")
    mreg, lreg = F+8, F+10
    O = F + 12
    A(f"v_mov_b32 v13, v{mreg}")
    for k in range(4):
        A(f"v_lshlrev_b32 v{O+2*k}, 16, v{F+2*k}")
        A(f"v_and_b32 v{O+2*k+1}, 0xffff0000, v{F+2*k}")
    for ctl in RED8:
        A(f"v_max_f32_dpp v13, v13, v13 {ctl} {DPPM}")
        A("s_nop 1")
    A(f"v_sub_f32 v13, v{mreg}, v13")
    A(f"v_mul_f32 v13, s{sC}, v13")
    A("v_exp_f32 v13, v13")
    A("s_nop 0")
    A(f"v_mul_f32 v14, v13, v{lreg}")
    for k in range(8):
        A(f"v_mul_f32 v{O+k}, v13, v{O+k}")
    for ctl in RED8:
        A(f"v_add_f32_dpp v14, v14, v14 {ctl} {DPPM}")
        for k in range(8):
            A(f"v_add_f32_dpp v{O+k}, v{O+k}, v{O+k} {ctl} {DPPM}")
    A(f"v_cmp_gt_u32 vcc, 8, v{vR}")
    A("v_rcp_f32 v14, v14")
    A("s_waitcnt lgkmcnt(0)")
    A(f"v_cndmask_b32 v15, v{GT+1}, v{GT}, vcc")
    A("v_mul_f32 v14, v14, v15")
    for k in range(8):
        A(f"v_mul_f32 v{O+k}, v14, v{O+k}")
    for i in range(4):
        A(f"v_cvt_pk_bf16_f32 v{AF+i}, v{O+2*i}, v{O+2*i+1}")
    A(f"v_lshlrev_b32 v11, 4, v{vLane}")
    A(f"ds_write_b128 v11, {vr(AF)} offset:{L_QF}")
    A("s_waitcnt lgkmcnt(0)")
    A("s_barrier")
    A("s_branch L_h2go")
    A.lab("L_h2wait")
    A("s_waitcnt vmcnt(0)")
    wo_perm()
    A(f"v_lshlrev_b32 v11, 4, v{vLane}")
    A("s_barrier")
    A(f"ds_read_b128 {vr(AF)}, v11 offset:{L_QF}")
    A("s_waitcnt lgkmcnt(0)")
    A.lab("L_h2go")
    for e in range(8):
        A(f"v_mfma_f32_16x16x32_bf16 {vr(ACC+4*e)}, {vr(AF)}, {vr(KA+4*e)}, 0")
    A(f"s_mul_i32 s{sT1}, s2, {H3_PSTRIDE}")
    A(f"s_lshl_b32 s{sT2}, s{sW}, 9")
    A(f"s_add_u32 s{sT1}, s{sT1}, s{sT2}")
    A(f"s_add_u32 s{sT1}, s{sT1}, {H3_OFF}")
    A(f"v_mov_b32 v{F+1}, s{sTt}"); A(f"v_mov_b32 v{F+3}, s{sTt+1}")
    A(f"s_mov_b64 exec, s[{sA0}:{sA1}]")
    A("s_nop 3")
    for e in range(0, 8, 2):
        A(f"ds_write2_b32 v{vYwB}, v{ACC+4*e}, v{ACC+4*(e+1)} offset0:{e} offset1:{e+1}")
    A("s_mov_b64 exec, -1")
    A("s_waitcnt lgkmcnt(0)")
    A(f"ds_read_b128 {vr(F+8)}, v{vYr}")
    A("s_waitcnt lgkmcnt(0)")
    A(f"v_cvt_pk_bf16_f32 v{F}, v{F+8}, v{F+9}")
    A(f"v_cvt_pk_bf16_f32 v{F+2}, v{F+10}, v{F+11}")
    A(f"s_mov_b64 exec, s[{sEx}:{sEx+1}]")
    A(f"buffer_store_dwordx4 {vr(F)}, v{vH3}, {sr(WS_)}, s{sT1} offen sc1")
    A("s_mov_b64 exec, -1")
    tst(2)
    if opt.get("tailcut") == 3: A("s_branch L_fin")
    A(f"s_cmp_ge_u32 s2, {NRED}")
    A("s_cbranch_scc1 L_fin")
    A(f"s_lshl_b32 s{sT1}, s2, 6")
    A(f"s_mul_i32 s{sT2}, s{sW}, {64*H3_PSTRIDE}")
    A(f"s_add_u32 s{sT1}, s{sT1}, s{sT2}")
    A(f"s_add_u32 s{sT1}, s{sT1}, {H3_OFF}")
    A(f"s_mov_b32 s{sSpin}, 0")
    A.lab("L_h3poll")
    A(f"s_mov_b32 s{sT2}, s{sT1}")
    for k in range(4):
        A(f"buffer_load_dwordx4 {vr(H+4*k)}, v{vRd}, {sr(WS_)}, s{sT2} offen sc1")
        if k < 3: A(f"s_add_u32 s{sT2}, s{sT2}, {16*H3_PSTRIDE}")
    A("s_waitcnt vmcnt(0)")
    tag_check(H, 4, 13, 14)
    A("s_cbranch_vccz L_h3got")
    if opt.get("sl3", 0): A(f"s_sleep {opt['sl3']}")
    A(f"s_add_u32 s{sSpin}, s{sSpin}, 1")
    A(f"s_cmp_lt_u32 s{sSpin}, {maxspin}")
    A("s_cbranch_scc1 L_h3poll")
    A.lab("L_h3got")
    tst(3)
    if stamps: A(f"s_mov_b32 s42, s{sSpin}")
    Y = H + 16
    for k in range(4):
        for half in range(2):
            d = H + 4*k + 2*half
            lo, hi = Y + 2*half, Y + 2*half + 1
            if k == 0:
                A(f"v_lshlrev_b32 v{lo}, 16, v{d}")
                A(f"v_and_b32 v{hi}, 0xffff0000, v{d}")
            else:
                A(f"v_lshlrev_b32 v13, 16, v{d}")
                A(f"v_and_b32 v14, 0xffff0000, v{d}")
                A(f"v_add_f32 v{lo}, v{lo}, v13")
                A(f"v_add_f32 v{hi}, v{hi}, v14")
    A("s_nop 1")
    allreduce_add([Y, Y+1, Y+2, Y+3], [Y+4, Y+5, Y+6, Y+7], ["row_ror:4", "row_ror:8"])
    A(f"s_lshl_b32 s{sT1}, s{sW}, 6")
    A(f"v_lshlrev_b32 v11, 4, v{vLane}")
    A(f"v_add_u32 v12, s{sT1}, v11")
    A("s_mov_b64 exec, 0xf")
    A(f"ds_write_b128 v12, {vr(Y)} offset:{L_Y2}")
    A("s_waitcnt lgkmcnt(0)")
    A("s_barrier")
    A(f"s_cmp_lg_u32 s{sW}, 0")
    A("s_cbranch_scc1 L_fin")
    for w in range(4):
        A(f"ds_read_b128 {vr(Y+8+4*w)}, v11 offset:{L_Y2+64*w}")
    A("s_waitcnt lgkmcnt(0)")
    for i in range(4):
        A(f"v_add_f32 v{Y+8+i}, v{Y+8+i}, v{Y+12+i}")
        A(f"v_add_f32 v{Y+16+i}, v{Y+16+i}, v{Y+20+i}")
    for i in range(4):
        A(f"v_add_f32 v{Y+8+i}, v{Y+8+i}, v{Y+16+i}")
    A(f"v_cvt_pk_bf16_f32 v{Y+8}, v{Y+8}, v{Y+9}")
    A(f"v_cvt_pk_bf16_f32 v{Y+9}, v{Y+10}, v{Y+11}")
    A(f"s_lshl_b32 s{sT1}, s2, 5")
    A(f"v_lshlrev_b32 v11, 3, v{vLane}")
    A(f"buffer_store_dwordx2 {vr(Y+8,2)}, v11, {sr(OUT_)}, s{sT1} offen")
    A.lab("L_fin")
    if stamps:
        A("s_mov_b64 exec, -1")
        A(f"s_memrealtime s[{sTs+6}:{sTs+7}]")
        A("s_waitcnt lgkmcnt(0)")
        rec_store(sTs, 8, DBG_OFF, 5, RING)
        rec_store(32, 8, DBG_OFF + 0x60000, 6, RING)
        A("s_mov_b32 s32, s41"); A("s_mov_b32 s33, 0"); A("s_mov_b32 s34, s42"); A("s_mov_b32 s35, 0")
        for k in range(4): A(f"s_mov_b32 s{36+k}, s{28+k}")
        rec_store(32, 8, DBG_OFF + 0x60000 + 32, 6, RING)
    A.lab("L_end")
    A("s_endpgm")

    out = [HEADER.rstrip("\n"),
           "; Override launch geometry by editing the next line (default: block=256,",
           "; grid=ceil(out_elems/256), lds=0). Harness parses it; keep it on one line.",
           f"; @launch grid=(256,1,1) block=(512,1,1) lds={LDS_BYTES}",
           '.amdgcn_target "amdgcn-amd-amdhsa--gfx950"', ".text", f".globl {KNAME}", ".p2align 8",
           f".type {KNAME},@function", f"{KNAME}:"]
    body = [l for l in A.L if l is not None]
    if any("CPF_DELTA" in l for l in body):
        k = next(i for i, l in enumerate(body) if "s_getpc_b64" in l)
        body.insert(k + 1, "L_after_getpc:")
        body = [l.replace("CPF_DELTA", f"(L_after_getpc-{KNAME})") for l in body]
    out += body
    out += ['.section .rodata,"a"', ".p2align 6", f".amdhsa_kernel {KNAME}",
            "  .amdhsa_next_free_vgpr 256", "  .amdhsa_next_free_sgpr 102", "  .amdhsa_accum_offset 256",
            "  .amdhsa_group_segment_fixed_size 0", "  .amdhsa_kernarg_size 112", "  .amdhsa_user_sgpr_count 2",
            "  .amdhsa_user_sgpr_kernarg_segment_ptr 1", "  .amdhsa_system_sgpr_workgroup_id_x 1", ".end_amdhsa_kernel"]
    return "\n".join(out) + "\n"

if __name__ == "__main__":
    ap = argparse.ArgumentParser()
    ap.add_argument("-o", default="gated_mix__gqa_block_cached__gqa_block_cached__decode.s")
    ap.add_argument("--stamps", type=int, nargs="?", const=1, default=0)
    ap.add_argument("--nt", default="nt")
    ap.add_argument("--opt", default="")
    a = ap.parse_args()
    open(a.o, "w").write(gen(stamps=a.stamps, nt=a.nt, opt=eval("dict(%s)" % a.opt)))
    print("wrote", a.o)
```

```python
import sys, argparse, struct

KNAME = "gated_mix__gqa_block_cached__gqa_block_cached__decode_kernel"
HEADER = open("gated_mix__gqa_block_cached__gqa_block_cached__decode.s.ref").read().split("; Override launch")[0]

QBUF_OFF = 0x0
CNT_OFF  = 0x14000
H2_OFF   = 0x20000
H2_PSTRIDE = 2176
H3_OFF   = 0x200000
H3_PSTRIDE = 3584
DBG_OFF  = 0x400000
WS_BYTES = 0x800000
NRED = 56

L_QP  = 0
L_QF  = 4096
L_ML  = L_QF + 1024
L_GATE = L_ML + 128
L_FLAG = L_GATE + 16
L_Y2  = L_GATE + 64
L_ACC = 6144
L_Y   = L_ACC + 16384
LDS_BYTES = 96 * 1024

C_SCALE = 1.4426950408889634 / 16.0
def f2u(f): return struct.unpack("<I", struct.pack("<f", f))[0]

class G:
    def __init__(s): s.L = []
    def __call__(s, t): s.L.append("    " + t)
    def lab(s, t): s.L.append(t + ":")
    def c(s, t): s.L.append("    ; " + t)

def vr(a, n=4): return f"v[{a}:{a+n-1}]"
def sr(a, n=4): return f"s[{a}:{a+n-1}]"
DPPM = "row_mask:0xf bank_mask:0xf"
RED8 = ("quad_perm:[1,0,3,2]", "quad_perm:[2,3,0,1]", "row_half_mirror")

def gen(stamps=False, nt="nt", maxspin=400000, opt=None):
    opt = opt or {}
    NS = opt.get("ns", 32)
    A = G()
    sG, sJ, sB, sSP, sBR, sKVH, sW = 3, 4, 5, 6, 7, 8, 9
    sO, sO2 = 10, 11
    sBase = 12
    sT0, sT1, sT2 = 14, 15, 88
    K_, V_, WQ_, WO_, WS_, X_, GW_, OUT_, DB_ = 44, 48, 52, 56, 60, 64, 68, 72, 76
    sSelLo, sSelHi, sC = 80, 81, 82
    sM2 = 84
    sA0, sA1 = 86, 87
    sSpin = 89
    sEx = 90
    sTs = 92
    sNon = 101
    sCons = 13
    sTt = 10
    sTC = 83
    sRot = 100
    vLane, vR, vGq, vKoff, vVoff, vM, vLs, vMsk = 2, 3, 4, 5, 6, 8, 9, 10
    RING = 16
    F = 144
    D = F
    ACC = 176
    QB = 208
    SA = 216
    TT = 248
    TL = SA
    PX = ACC
    AF = QB
    KA, H, WR, RG = RING, RING + 32, RING + 64, RING

    def tst(k):
        if stamps:
            A(f"s_memrealtime s[{32+2*k}:{33+2*k}]"); A("s_waitcnt lgkmcnt(0)")
    def xst(k):
        if stamps:
            A(f"s_memrealtime s[{16+2*k}:{17+2*k}]"); A("s_waitcnt lgkmcnt(0)")
    def rec_store(first_sgpr, n, off, lg, tmp, wait=True):
        A("s_mov_b64 exec, 1")
        A(f"s_lshl_b32 s{sT1}, s2, 3"); A(f"s_add_u32 s{sT1}, s{sT1}, s{sW}")
        A(f"s_lshl_b32 s{sT1}, s{sT1}, {lg}"); A(f"s_add_u32 s{sT1}, s{sT1}, {off}")
        for k in range(n): A(f"v_mov_b32 v{tmp+k}, s{first_sgpr+k}")
        for k in range(0, n, 4):
            A(f"buffer_store_dwordx4 v[{tmp+k}:{tmp+k+3}], off, {sr(WS_)}, s{sT1} offset:{4*k}")
        if wait: A("s_waitcnt vmcnt(0)")
        A("s_mov_b64 exec, -1")

    A.c("entry")
    A("s_cmp_ge_u32 s2, 256")
    A("s_cbranch_scc1 L_end")
    A(f"s_memrealtime s[{sTs}:{sTs+1}]")
    A("s_load_dwordx16 s[16:31], s[0:1], 0")
    A("s_load_dwordx8 s[32:39], s[0:1], 64")
    A("s_load_dwordx4 s[40:43], s[0:1], 96")
    A("v_lshrrev_b32 v1, 6, v0")
    A(f"v_and_b32 v{vLane}, 63, v0")
    A(f"v_readfirstlane_b32 s{sW}, v1")
    A(f"s_and_b32 s{sKVH}, s2, 7")
    A(f"s_bfe_u32 s{sB}, s2, 0x10003")
    A(f"s_bfe_u32 s{sBR}, s2, 0x10004")
    A(f"s_lshr_b32 s{sSP}, s2, 5")
    A(f"s_lshl_b32 s{sG}, s{sBR}, 3")
    A(f"s_add_u32 s{sG}, s{sG}, s{sKVH}")
    A(f"s_lshl_b32 s{sJ}, s{sB}, 3")
    A(f"s_add_u32 s{sJ}, s{sJ}, s{sSP}")
    A(f"v_and_b32 v{vR}, 15, v{vLane}")
    A(f"v_lshrrev_b32 v{vGq}, 4, v{vLane}")
    A(f"v_lshrrev_b32 v11, 2, v{vR}")
    A(f"v_lshlrev_b32 v11, 9, v11")
    A(f"v_and_b32 v12, 3, v{vR}")
    A(f"v_lshlrev_b32 v12, 4, v12")
    A(f"v_lshlrev_b32 v13, 6, v{vGq}")
    A(f"v_add3_u32 v{vKoff}, v11, v12, v13")
    A(f"v_lshlrev_b32 v11, 9, v{vGq}")
    A(f"v_lshlrev_b32 v12, 4, v{vR}")
    A(f"v_add_u32 v{vVoff}, v11, v12")
    A(f"s_mov_b32 s{sSelLo}, 0x05040100")
    A(f"s_mov_b32 s{sSelHi}, 0x07060302")
    A(f"s_mov_b32 s{sC}, {f2u(C_SCALE):#x}")
    A(f"s_mov_b32 s{sTC}, 0x9E3779B9")
    A(f"s_mov_b32 s{sM2}, 0x00030003")
    A(f"s_mov_b32 s{sM2+1}, 0x00030003")
    A(f"v_cndmask_b32 v{vMsk}, 0, -1, s[{sM2}:{sM2+1}]")
    A(f"s_mul_i32 s{sRot}, s2, {opt.get('wrot', 0)}")
    A(f"s_add_u32 s{sRot}, s{sRot}, s{sW}")
    A(f"s_lshl_b32 s{sBase}, s{sSP}, 19")
    A(f"s_lshl_b32 s{sT1}, s{sB}, 3")
    A(f"s_add_u32 s{sT1}, s{sT1}, s{sKVH}")
    A(f"s_lshl_b32 s{sT1}, s{sT1}, 22")
    A("s_waitcnt lgkmcnt(0)")
    A(f"s_cmp_eq_u32 s{sBR}, 0")
    for (srd, a, b_) in ((WQ_, 22, 32), (K_, 18, 28), (V_, 20, 30), (WO_, 24, 34)):
        A(f"s_cselect_b32 s{srd}, s{a}, s{b_}")
        A(f"s_cselect_b32 s{srd+1}, s{a+1}, s{b_+1}")
    for srd in (K_, V_):
        A(f"s_add_u32 s{srd}, s{srd}, s{sT1}")
        A(f"s_addc_u32 s{srd+1}, s{srd+1}, 0")
        A(f"s_mov_b32 s{srd+2}, 0x400000")
        A(f"s_mov_b32 s{srd+3}, 0x20000")
    for srd in (WQ_, WO_):
        A(f"s_mov_b32 s{srd+2}, {448*4096*2}")
        A(f"s_mov_b32 s{srd+3}, 0x20000")
    for (srd, a, n) in ((WS_, 42, WS_BYTES), (X_, 16, 1792), (GW_, 36, 896), (OUT_, 38, 1792), (DB_, 40, 256)):
        A(f"s_mov_b32 s{srd}, s{a}")
        A(f"s_mov_b32 s{srd+1}, s{a+1}")
        A(f"s_mov_b32 s{srd+2}, {n}")
        A(f"s_mov_b32 s{srd+3}, 0x20000")

    def tile_off(n):
        A(f"s_add_u32 s{sO}, s{sRot}, {8*n}")
        A(f"s_and_b32 s{sO}, s{sO}, 63")
        A(f"s_lshl_b32 s{sO}, s{sO}, 13")
        A(f"s_add_u32 s{sO}, s{sO}, s{sBase}")
        A(f"s_add_u32 s{sO2}, s{sO}, 4096")
    def slot(i): return RING + 4 * (i % NS)
    def issue(i):
        if i >= 128: return
        j = i & 7
        if j == 0: tile_off((i >> 3) & 7)
        if i < 64:
            g_, hf = j >> 1, j & 1
            so = sO if g_ < 2 else sO2
            A(f"buffer_load_dwordx4 {vr(slot(i))}, v{vKoff}, {sr(K_)}, s{so} offen offset:{(g_&1)*2048+hf*256} {nt}")
        else:
            hf, jp = j >> 2, j & 3
            so = sO if jp < 2 else sO2
            A(f"buffer_load_dwordx4 {vr(slot(i))}, v{vVoff}, {sr(V_)}, s{so} offen offset:{(jp&1)*2048+hf*256} {nt}")
    def prefetch(lo, hi):
        for i in range(lo, hi): issue(i)
    def wo_loads():
        A(f"s_lshl_b32 s{sT1}, s{sKVH}, 9")
        A(f"s_lshl_b32 s{sT2}, s{sJ}, 5")
        A(f"s_add_u32 s{sT1}, s{sT1}, s{sT2}")
        A(f"s_mul_i32 s{sT1}, s{sT1}, 896")
        A(f"s_lshl_b32 s{sT2}, s{sW}, 8")
        A(f"s_add_u32 s{sT1}, s{sT1}, s{sT2}")
        A(f"v_mul_u32_u24 v11, {8*896}, v{vGq}")
        A(f"v_lshlrev_b32 v12, 4, v{vR}")
        A(f"v_add_u32 v15, v11, v12")
        for jj in range(8):
            A(f"buffer_load_dwordx4 {vr(WR+4*jj)}, v15, {sr(WO_)}, s{sT1} offen {nt}")
            if jj < 7: A(f"s_add_u32 s{sT1}, s{sT1}, 896")
    def wo_perm():
        for i in range(4):
            for d in range(4):
                A(f"v_perm_b32 v{KA+4*(2*d)+i}, v{WR+4*(2*i+1)+d}, v{WR+4*(2*i)+d}, s{sSelLo}")
                A(f"v_perm_b32 v{KA+4*(2*d+1)+i}, v{WR+4*(2*i+1)+d}, v{WR+4*(2*i)+d}, s{sSelHi}")
    def allreduce_add(regs, tmp, ctls):
        for ctl in ctls:
            for r_ in regs:
                A(f"v_add_f32_dpp v{r_}, v{r_}, v{r_} {ctl} {DPPM}")
            A("s_nop 1")
        for sw in ("v_permlane16_swap_b32", "v_permlane32_swap_b32"):
            for r_, t_ in zip(regs, tmp): A(f"v_mov_b32 v{t_}, v{r_}")
            A("s_nop 1")
            for r_, t_ in zip(regs, tmp): A(f"{sw} v{r_}, v{t_}")
            A("s_nop 1")
            for r_, t_ in zip(regs, tmp): A(f"v_add_f32 v{r_}, v{r_}, v{t_}")
            A("s_nop 1")

    def tag_check(r, npairs, acc, tmp):
        for k in range(npairs):
            ta, tb = r + 4*k + 1, r + 4*k + 3
            A(f"v_xor_b32 v{tmp}, v{ta}, v{tb}")
            A(f"v_xor_b32 v{tmp}, s{sTC}, v{tmp}")
            A(f"v_subrev_u32 v{ta}, s{sNon}, v{ta}")
            A(f"v_lshrrev_b32 v{ta}, 24, v{ta}")
            if k == 0: A(f"v_or_b32 v{acc}, v{tmp}, v{ta}")
            else: A(f"v_or3_b32 v{acc}, v{acc}, v{tmp}, v{ta}")
        A(f"v_cmp_ne_u32 vcc, 0, v{acc}")
    E1 = opt.get("e1", 16)
    if opt.get("cpf"):
        A(f"s_cmp_lg_u32 s{sW}, {opt.get('cpfw', 7)}")
        A("s_cbranch_scc1 L_nocpf")
        A("s_getpc_b64 s[40:41]")
        A("L_pc0:".replace(":", "") and "s_nop 0")
        A(f"s_sub_u32 s40, s40, CPF_DELTA")
        A("s_subb_u32 s41, s41, 0")
        A(f"v_lshlrev_b32 v11, 4, v{vLane}")
        for k in range(opt["cpf"]):
            A(f"global_load_dwordx4 v[{ACC+4*(k%8)}:{ACC+4*(k%8)+3}], v11, s[40:41]")
            A("v_add_u32 v11, 1024, v11")
        A("s_waitcnt vmcnt(0)") if opt.get("cpfwait") else None
        A.lab("L_nocpf")
    if opt.get("pure"):
        prefetch(0, NS)
        A("s_branch L_main")
    A(f"s_cmp_eq_u32 s{sW}, 0")
    A("s_cbranch_scc1 L_helper")
    A(f"s_cmp_lt_u32 s{sW}, %d" % (1 if opt.get("nowq") else 5))
    A("s_cbranch_scc1 L_qproj")
    A("s_barrier")
    prefetch(0, E1)
    A("s_barrier")
    if opt.get("stage"): A("s_barrier")
    prefetch(E1, NS)
    A("s_branch L_qwait")
    A.lab("L_qproj")
    A.c("---- waves 1..4: q-proj partial (128 rows each)")
    A(f"s_sub_u32 s{sT0}, s{sW}, 1")
    A(f"v_lshrrev_b32 v11, 2, v{vLane}")
    A(f"v_and_b32 v12, 3, v{vLane}")
    A(f"s_lshl_b32 s{sT1}, s{sT0}, 7")
    A(f"v_lshlrev_b32 v11, 3, v11")
    A(f"v_add_u32 v11, s{sT1}, v11")
    A(f"v_lshlrev_b32 v13, 1, v11")
    A(f"v_lshlrev_b32 v11, 13, v11")
    A(f"v_lshlrev_b32 v12, 4, v12")
    A(f"v_add_u32 v14, v11, v12")
    A(f"s_lshl_b32 s{sT1}, s{sKVH}, 10")
    A(f"s_lshl_b32 s{sT2}, s{sJ}, 6")
    A(f"s_add_u32 s{sT1}, s{sT1}, s{sT2}")
    QW = RING
    wqnt = nt if opt.get("wqnt", 1) else opt.get("wqpol", "")
    for jj in range(8):
        A(f"buffer_load_dwordx4 {vr(QW+4*jj)}, v14, {sr(WQ_)}, s{sT1} offen {wqnt}")
        if jj < 7: A(f"s_add_u32 s{sT1}, s{sT1}, 8192")
    A(f"buffer_load_dwordx4 {vr(PX)}, v13, {sr(X_)}, 0 offen")
    A(f"buffer_load_dwordx4 {vr(PX+4)}, v13, {sr(X_)}, 0 offen offset:896")
    A("s_barrier")
    QA = F
    for k in range(16): A(f"v_mov_b32 v{QA+k}, 0")
    A("s_waitcnt vmcnt(0)")
    xst(0)
    for a in range(4):
        for d in range(4):
            A(f"v_perm_b32 v{TT+2*d}, v{QW+4*(2*a+1)+d}, v{QW+4*(2*a)+d}, s{sSelLo}")
            A(f"v_perm_b32 v{TT+2*d+1}, v{QW+4*(2*a+1)+d}, v{QW+4*(2*a)+d}, s{sSelHi}")
        for b_ in range(2):
            for cc in range(8):
                A(f"v_dot2_f32_bf16 v{QA+8*b_+cc}, v{TT+cc}, v{PX+4*b_+a}, v{QA+8*b_+cc}")
    A("s_nop 3")
    for ctl in ("row_ror:4", "row_ror:8"):
        for k in range(16):
            A(f"v_add_f32_dpp v{QA+k}, v{QA+k}, v{QA+k} {ctl} {DPPM}")
    A("s_nop 1")
    for k in range(0, 16, 2):
        A(f"v_permlane16_swap_b32 v{QA+k}, v{QA+k+1}")
    A("s_nop 1")
    for k in range(0, 16, 2):
        A(f"v_add_f32 v{QA+k}, v{QA+k}, v{QA+k+1}")
    A("s_nop 1")
    for k in range(0, 16, 4):
        A(f"v_permlane32_swap_b32 v{QA+k}, v{QA+k+2}")
    A("s_nop 1")
    for k in range(0, 16, 4):
        A(f"v_add_f32 v{QA+k}, v{QA+k}, v{QA+k+2}")
    A(f"s_lshl_b32 s{sT2}, s{sT0}, 10")
    A(f"v_lshlrev_b32 v11, 2, v{vLane}")
    A(f"v_add_u32 v11, s{sT2}, v11")
    for k in range(4):
        A(f"ds_write_b32 v11, v{QA+4*k} offset:{L_QP+256*k}")
    A("s_waitcnt lgkmcnt(0)")
    xst(1)
    A("s_barrier")
    xst(2)
    if opt.get("stage"): A("s_barrier")
    prefetch(0, NS)
    A.lab("L_qwait")
    xst(3)
    A(f"v_mov_b32 v11, {L_FLAG}")
    A.lab("L_qspin")
    A("ds_read_b32 v12, v11")
    A("s_waitcnt lgkmcnt(0)")
    A(f"v_readfirstlane_b32 s{sT1}, v12")
    A(f"s_cmp_lg_u32 s{sT1}, 0")
    A("s_cbranch_scc1 L_main")
    A("s_sleep 1")
    A("s_branch L_qspin")

    A.lab("L_helper")
    A.c("---- wave 0: nonce, gate, q reduce/publish/poll")
    PW = F + 16
    vGN = TL + 16
    A(f"v_lshlrev_b32 v11, 4, v{vLane}")
    A(f"buffer_load_dwordx4 {vr(PX)}, v11, {sr(X_)}, 0 offen")
    A(f"buffer_load_dwordx4 {vr(PX+4)}, v11, {sr(X_)}, 0 offen offset:896")
    A(f"buffer_load_dwordx4 {vr(PW)}, v11, {sr(GW_)}, 0 offen")
    A(f"v_mov_b32 v12, {L_FLAG}")
    A("v_mov_b32 v13, %d" % (1 if opt.get("noq") else 0))
    A("ds_write_b32 v12, v13")
    A("v_mov_b32 v13, 0")
    A("ds_write_b32 v12, v13 offset:4")
    A("s_waitcnt lgkmcnt(0)")
    A("s_barrier")
    A("s_waitcnt vmcnt(0)")
    xst(0)
    A("v_mov_b32 v12, 0"); A("v_mov_b32 v13, 0")
    for d in range(4):
        A(f"v_dot2_f32_bf16 v12, v{PX+d}, v{PW+d}, v12")
        A(f"v_dot2_f32_bf16 v13, v{PX+4+d}, v{PW+d}, v13")
    A("s_nop 3")
    allreduce_add([12, 13], [14, 15], list(RED8) + ["row_mirror"])
    A(f"s_mov_b32 s{sT1}, {f2u(-1.4426950408889634):#x}")
    A(f"s_mov_b32 s{sT2}, {f2u(1.4426950408889634):#x}")
    A(f"s_cmp_eq_u32 s{sBR}, 0")
    A(f"s_cselect_b32 s{sT1}, s{sT1}, s{sT2}")
    A(f"v_mul_f32 v12, s{sT1}, v12"); A(f"v_mul_f32 v13, s{sT1}, v13")
    A("v_exp_f32 v12, v12"); A("v_exp_f32 v13, v13")
    A("s_nop 0")
    A("v_add_f32 v12, 1.0, v12"); A("v_add_f32 v13, 1.0, v13")
    A("v_rcp_f32 v12, v12"); A("v_rcp_f32 v13, v13")
    A(f"v_mov_b32 v11, {L_GATE}")
    A("ds_write_b64 v11, v[12:13]")
    A(f"v_lshrrev_b32 v11, 5, v{vLane}")
    A(f"v_lshlrev_b32 v11, 9, v11")
    A(f"v_bfe_u32 v12, v{vLane}, 2, 1")
    A(f"v_lshlrev_b32 v12, 8, v12")
    A(f"v_and_b32 v13, 3, v{vLane}")
    A(f"v_lshlrev_b32 v13, 6, v13")
    A(f"v_add3_u32 v11, v11, v12, v13")
    A(f"v_bfe_u32 v12, v{vLane}, 3, 2")
    A(f"v_lshlrev_b32 v12, 2, v12")
    A(f"v_add_u32 v11, v11, v12")
    A(f"v_lshrrev_b32 v14, 5, v{vLane}")
    A(f"v_lshlrev_b32 v14, 11, v14")
    A(f"v_and_b32 v12, 31, v{vLane}")
    A(f"v_lshlrev_b32 v12, 2, v12")
    A(f"v_add_u32 v14, v14, v12")
    A(f"v_lshlrev_b32 v15, 5, v{vLane}")
    A(f"s_lshl_b32 s{sT1}, s{sG}, 12")
    A(f"s_lshl_b32 s{sT2}, s{sJ}, 7")
    A(f"s_add_u32 s{sT1}, s{sT1}, s{sT2}")
    A(f"s_lshl_b32 s{sT0}, s{sG}, 12")
    A(f"s_lshl_b32 s{sT2}, s{sB}, 11")
    A(f"s_add_u32 s{sT0}, s{sT0}, s{sT2}")
    A(f"s_mov_b32 s{sEx}, 0x55555555"); A(f"s_mov_b32 s{sEx+1}, 0x55555555")
    A(f"v_bfe_u32 v12, v{vLane}, 1, 1")
    A(f"v_mul_lo_u32 v12, v12, s{sTC}")
    A(f"v_xor_b32 v{TL+5}, s{sTs}, v12")
    A(f"s_sub_u32 s{sNon}, s{sTs}, 2000")
    A("s_waitcnt lgkmcnt(0)")
    xst(1)
    A("s_barrier")
    xst(2)
    for k in range(4):
        A(f"ds_read_b32 v{TL+k}, v11 offset:{L_QP+1024*k}")
    A("s_waitcnt lgkmcnt(0)")
    A(f"v_add_f32 v{TL}, v{TL}, v{TL+1}")
    A(f"v_add_f32 v{TL+2}, v{TL+2}, v{TL+3}")
    A(f"v_add_f32 v{TL}, v{TL}, v{TL+2}")
    A("s_nop 1")
    A(f"v_mov_b32_dpp v{TL+1}, v{TL} quad_perm:[1,1,3,3] {DPPM}")
    A("s_nop 0")
    A(f"v_cvt_pk_bf16_f32 v{TL+4}, v{TL}, v{TL+1}")
    A(f"s_mov_b64 exec, s[{sEx}:{sEx+1}]")
    A(f"buffer_store_dwordx2 {vr(TL+4,2)}, v14, {sr(WS_)}, s{sT1} offen offset:{QBUF_OFF} sc1")
    A("s_mov_b64 exec, -1")
    xst(3)
    def qpoll(r):
        A(f"buffer_load_dwordx4 {vr(r)}, v15, {sr(WS_)}, s{sT0} offen offset:{QBUF_OFF} sc1")
        A(f"buffer_load_dwordx4 {vr(r+4)}, v15, {sr(WS_)}, s{sT0} offen offset:{QBUF_OFF+16} sc1")
    def qcheck(r, lab):
        tag_check(r, 2, 11, 12)
        A(f"s_cbranch_vccz {lab}")
    PB, PC = F, F + 8
    if opt.get("noq"): A("s_branch L_qgot")
    q1, q2 = opt.get("q1", 8), opt.get("q2", 16)
    if q1: A(f"s_sleep {q1}")
    qpoll(QB)
    if opt.get("stage") == 1: A("s_barrier")
    A(f"s_sleep {q2}")
    qpoll(PB)
    if opt.get("stage") == 2: A("s_barrier")
    A(f"s_sleep {q2}")
    qpoll(PC)
    A("s_waitcnt vmcnt(4)"); qcheck(QB, "L_qgot")
    A("s_waitcnt vmcnt(2)"); qcheck(PB, "L_qgotB")
    A("s_waitcnt vmcnt(0)"); qcheck(PC, "L_qgotC")
    A(f"s_mov_b32 s{sSpin}, 0")
    A.lab("L_qpoll")
    qpoll(QB)
    A("s_waitcnt vmcnt(0)"); qcheck(QB, "L_qgot")
    A(f"s_add_u32 s{sSpin}, s{sSpin}, 1")
    A(f"s_cmp_lt_u32 s{sSpin}, {maxspin}")
    A("s_cbranch_scc1 L_qpoll")
    A("s_branch L_qgot")
    A.lab("L_qgotB")
    for k in range(8): A(f"v_mov_b32 v{QB+k}, v{PB+k}")
    A("s_branch L_qgot")
    A.lab("L_qgotC")
    for k in range(8): A(f"v_mov_b32 v{QB+k}, v{PC+k}")
    A.lab("L_qgot")
    xst(4)
    A(f"v_mov_b32 v{QB+1}, v{QB+2}")
    A(f"v_mov_b32 v{QB+2}, v{QB+4}")
    A(f"v_mov_b32 v{QB+3}, v{QB+6}")
    A(f"v_lshlrev_b32 v11, 4, v{vLane}")
    A(f"ds_write_b128 v11, {vr(QB)} offset:{L_QF}")
    A(f"v_mov_b32 v11, {L_GATE}")
    A("v_mov_b32 v13, 1")
    A("s_waitcnt lgkmcnt(0)")
    A(f"ds_write_b32 v11, v13 offset:{L_FLAG-L_GATE}")
    A("s_waitcnt vmcnt(0)")
    prefetch(0, NS)
    xst(5)

    A.lab("L_main")
    nst = 0
    if stamps == 1:
        rec_store(16, 12, DBG_OFF + 0x20000, 6, TL, wait=False); nst = 3
    A(f"v_and_b32 v11, 1, v{vR}")
    A(f"v_lshlrev_b32 v11, 9, v11")
    A(f"v_bfe_u32 v12, v{vR}, 1, 2")
    A(f"v_lshlrev_b32 v12, 4, v12")
    A(f"v_lshlrev_b32 v13, 6, v{vGq}")
    A(f"v_add3_u32 v11, v11, v12, v13")
    A(f"ds_read_b128 {vr(QB)}, v11 offset:{L_QF}")
    A(f"ds_read_b128 {vr(QB+4)}, v11 offset:{L_QF+256}")
    for k in range(32): A(f"v_mov_b32 v{ACC+k}, 0")
    A("s_waitcnt lgkmcnt(0)")
    if stamps:
        A(f"s_memrealtime s[{sTs+2}:{sTs+3}]")
    nocomp = opt.get("nocomp")
    log = list(range(NS)) + ["x"] * nst
    def wait_for(i):
        k = log.index(i)
        A(f"s_waitcnt vmcnt({min(63, len(log) - 1 - k)})")
    nxt = NS
    def issue_next():
        nonlocal nxt
        if nxt < 128:
            issue(nxt); log.append(nxt); nxt += 1
    for n in range(8):
        for j in range(8):
            i = 8 * n + j
            g_, hf = j >> 1, j & 1
            wait_for(i)
            c_ = "0" if hf == 0 else vr(D+4*g_)
            if not nocomp:
                A(f"v_mfma_f32_16x16x32_bf16 {vr(D+4*g_)}, {vr(slot(i))}, {vr(QB+4*hf)}, {c_}")
            issue_next()
        if stamps and n in (1, 3, 7): A(f"s_memrealtime s[{16+2*{1:0,3:1,7:2}[n]}:{17+2*{1:0,3:1,7:2}[n]}]")
        if nocomp: continue
        Sn = SA + 4 * n
        for g_ in range(3):
            A(f"v_add_f32_dpp v{TT+2*g_}, v{D+4*g_+1}, v{D+4*g_+0} row_shl:2 {DPPM} bound_ctrl:0")
            A(f"v_add_f32_dpp v{TT+2*g_+1}, v{D+4*g_+3}, v{D+4*g_+2} row_shl:2 {DPPM} bound_ctrl:0")
        A("s_nop 3")
        A(f"v_add_f32_dpp v{TT+6}, v{D+13}, v{D+12} row_shl:2 {DPPM} bound_ctrl:0")
        A(f"v_add_f32_dpp v{TT+7}, v{D+15}, v{D+14} row_shl:2 {DPPM} bound_ctrl:0")
        for g_ in range(3):
            A(f"v_add_f32_dpp v{Sn+g_}, v{TT+2*g_+1}, v{TT+2*g_} row_shl:4 {DPPM} bound_ctrl:0")
        A(f"v_add_f32_dpp v{Sn+3}, v{TT+7}, v{TT+6} row_shl:4 {DPPM} bound_ctrl:0")
    if not nocomp:
        A(f"v_max3_f32 v11, v{SA}, v{SA+1}, v{SA+2}")
        A(f"v_max3_f32 v12, v{SA+3}, v{SA+4}, v{SA+5}")
        for k in range(6, 30, 4):
            A(f"v_max3_f32 v11, v11, v{SA+k}, v{SA+k+1}")
            A(f"v_max3_f32 v12, v12, v{SA+k+2}, v{SA+k+3}")
        A(f"v_max3_f32 v11, v11, v{SA+30}, v{SA+31}")
        A("v_max_f32 v11, v11, v12")
        A("v_mov_b32 v12, v11")
        A("s_nop 1")
        A("v_permlane32_swap_b32 v11, v12")
        A("s_nop 1")
        A("v_max_f32 v11, v11, v12")
        A("v_mov_b32 v12, v11")
        A("s_nop 1")
        A("v_permlane16_swap_b32 v11, v12")
        A("s_nop 1")
        A(f"v_max_f32 v{vM}, v11, v12")
        A(f"v_mul_f32 v12, s{sC}, v{vM}")
        for k in range(32):
            A(f"v_fma_f32 v{SA+k}, v{SA+k}, s{sC}, -v12")
        for k in range(32):
            A(f"v_exp_f32 v{SA+k}, v{SA+k}")
        A("s_nop 0")
        A(f"v_add_f32 v{vLs}, v{SA}, v{SA+1}")
        A(f"v_add_f32 v13, v{SA+2}, v{SA+3}")
        for k in range(4, 32, 2):
            r_ = vLs if (k >> 1) & 1 == 0 else 13
            A(f"v_add_f32 v11, v{SA+k}, v{SA+k+1}")
            A(f"v_add_f32 v{r_}, v{r_}, v11")
        A(f"v_add_f32 v{vLs}, v{vLs}, v13")
        for n in range(8):
            Sn = SA + 4 * n
            A(f"v_cvt_pk_bf16_f32 v{Sn}, v{Sn}, v{Sn+1}")
            A(f"v_cvt_pk_bf16_f32 v{Sn+1}, v{Sn+2}, v{Sn+3}")
        for n in range(8):
            Sn = SA + 4 * n
            A(f"v_and_b32 v{Sn}, v{Sn}, v{vMsk}")
            A(f"v_and_b32 v{Sn+1}, v{Sn+1}, v{vMsk}")
        for n in range(8):
            Sn = SA + 4 * n
            A(f"v_mov_b32_dpp v{Sn+2}, v{Sn} row_shr:2 {DPPM} bound_ctrl:0")
            A(f"v_mov_b32_dpp v{Sn+3}, v{Sn+1} row_shr:2 {DPPM} bound_ctrl:0")
    for n in range(8):
        for i2 in range(4):
            i = 64 + 8 * n + 2 * i2
            wait_for(i + 1)
            a_, b_ = slot(i), slot(i + 1)
            for d in range(4 if not nocomp else 0):
                A(f"v_perm_b32 v{F+4*(2*d)+i2}, v{b_+d}, v{a_+d}, s{sSelLo}")
                A(f"v_perm_b32 v{F+4*(2*d+1)+i2}, v{b_+d}, v{a_+d}, s{sSelHi}")
            issue_next(); issue_next()
        if n == opt.get("late", 6):
            A(f"s_cmp_lg_u32 s{sW}, 7")
            A("s_cbranch_scc1 L_nolate")
            A(f"v_mov_b32 v11, {L_FLAG}")
            A("v_mov_b32 v12, 1")
            A("ds_write_b32 v11, v12 offset:4")
            A.lab("L_nolate")
        if stamps and n in (1, 3, 5): A(f"s_memrealtime s[{16+2*{1:3,3:4,5:5}[n]}:{17+2*{1:3,3:4,5:5}[n]}]")
        if nocomp: continue
        A("s_nop 1")
        for e in range(8):
            A(f"v_mfma_f32_16x16x32_bf16 {vr(ACC+4*e)}, {vr(SA+4*n)}, {vr(F+4*e)}, {vr(ACC+4*e)}")
    A.c("---- wave finish")
    if stamps:
        A(f"s_memrealtime s[{sTs+4}:{sTs+5}]")
        A("s_waitcnt lgkmcnt(0)")
        if stamps == 1: rec_store(16, 12, DBG_OFF + 0xA0000, 6, RING, wait=False)
    if opt.get("notail"): A("s_branch L_fin")
    if opt.get("tailcut") == 1: A("s_waitcnt vmcnt(0)"); A("s_branch L_fin")
    GT = TT + 4
    A(f"s_memrealtime s[{sTt}:{sTt+1}]")
    A(f"s_lshl_b32 s{sT1}, s{sW}, 11")
    A(f"v_lshlrev_b32 v14, 7, v{vLane}")
    A(f"v_add_u32 v14, s{sT1}, v14")
    A(f"v_mov_b32 v12, v{vLs}")
    A(f"v_mov_b32 v13, {L_GATE}")
    A("s_mov_b64 exec, 0xffff")
    for e in range(8):
        A(f"ds_write_b128 v14, {vr(ACC+4*e)} offset:{L_ACC+16*e}")
    A("s_mov_b64 exec, -1")
    A(f"v_permlane32_swap_b32 v{vLs}, v12")
    A("s_nop 1")
    A(f"v_add_f32 v{vLs}, v{vLs}, v12")
    A(f"v_mov_b32 v12, v{vLs}")
    A(f"s_lshl_b32 s{sT1}, s{sW}, 4")
    A(f"v_lshlrev_b32 v11, 3, v{vLane}")
    A(f"v_permlane16_swap_b32 v{vLs}, v12")
    A(f"v_add_u32 v11, s{sT1}, v11")
    A("s_nop 0")
    A(f"v_add_f32 v{vLs}, v{vLs}, v12")
    A("s_mov_b64 exec, 3")
    A(f"ds_write_b64 v11, v[{vM}:{vLs}] offset:{L_ML}")
    A("s_mov_b64 exec, -1")
    A(f"s_cmp_ge_u32 s{sW}, 4")
    A("s_cbranch_scc1 L_nowo2")
    A(f"v_mov_b32 v11, {L_FLAG}")
    A.lab("L_latespin")
    A("ds_read_b32 v12, v11 offset:4")
    A("s_waitcnt lgkmcnt(0)")
    A(f"v_readfirstlane_b32 s{sT1}, v12")
    A(f"s_cmp_lg_u32 s{sT1}, 0")
    A("s_cbranch_scc1 L_latego")
    A("s_sleep 4")
    A("s_branch L_latespin")
    A.lab("L_latego")
    wo_loads()
    A.lab("L_nowo2")
    A("s_waitcnt lgkmcnt(0)")
    A(f"s_mov_b32 s{sNon}, s{sTs}")
    A(f"s_xor_b32 s{sTt+1}, s{sTt}, s{sTC}")
    A("s_barrier")
    A(f"ds_read_b64 v[{GT}:{GT+1}], v13")
    tst(0)
    A(f"s_cmp_lt_u32 s{sW}, 4")
    A("s_cbranch_scc1 L_h2")
    A(f"s_cmp_gt_u32 s{sW}, 5")
    A("s_cbranch_scc1 L_fin")
    A.c("---- merge: waves 4,5")
    A(f"v_and_b32 v11, 7, v{vLane}")
    A(f"v_lshlrev_b32 v11, 4, v11")
    A(f"v_bfe_u32 v12, v{vLane}, 3, 1")
    A(f"v_lshlrev_b32 v12, 3, v12")
    A("v_add_u32 v11, v11, v12")
    A(f"ds_read_b64 v[14:15], v11 offset:{L_ML}")
    A(f"s_sub_u32 s{sT1}, s{sW}, 4")
    A(f"s_lshl_b32 s{sT1}, s{sT1}, 10")
    A(f"v_lshlrev_b32 v13, 4, v{vLane}")
    A(f"v_add_u32 v13, s{sT1}, v13")
    for w in range(8):
        A(f"ds_read_b128 {vr(RG+4*w)}, v13 offset:{L_ACC+2048*w}")
    A(f"s_lshl_b32 s{sT2}, s{sG}, 4")
    A(f"s_add_u32 s{sT2}, s{sT2}, s{sJ}")
    A(f"s_mul_i32 s{sT2}, s{sT2}, {H2_PSTRIDE}")
    A(f"s_add_u32 s{sT2}, s{sT2}, {H2_OFF}")
    A(f"s_lshr_b32 s{sT1}, s{sT1}, 2")
    A(f"s_add_u32 s{sT1}, s{sT1}, s{sT2}")
    A(f"s_mov_b32 s{sCons}, s{sT2}")
    A(f"v_lshlrev_b32 v13, 2, v{vLane}")
    A(f"s_mov_b32 s{sEx}, 0x55555555"); A(f"s_mov_b32 s{sEx+1}, 0x55555555")
    A("s_waitcnt lgkmcnt(8)")
    A("v_mov_b32 v11, v14")
    A("s_nop 1")
    for ctl in RED8:
        A(f"v_max_f32_dpp v11, v11, v11 {ctl} {DPPM}")
        A("s_nop 1")
    A("v_sub_f32 v12, v14, v11")
    A(f"v_mul_f32 v12, s{sC}, v12")
    A("v_exp_f32 v12, v12")
    A("s_nop 0")
    A("v_mul_f32 v15, v15, v12")
    for k in range(16):
        A(f"v_readlane_b32 s{16+k}, v12, {k}")
    for ctl in RED8:
        A(f"v_add_f32_dpp v15, v15, v15 {ctl} {DPPM}")
        A("s_nop 1")
    A(f"v_bfe_u32 v10, v{vLane}, 1, 1")
    A(f"v_mul_lo_u32 v10, v10, s{sTC}")
    A(f"v_xor_b32 v10, s{sTt}, v10")
    for i in range(4): A(f"v_mov_b32 v{TL+2*i+1}, v10")
    A("s_waitcnt lgkmcnt(0)")
    for i in range(4):
        A(f"v_mul_f32 v{TL+2*i}, s{16+8*(i&1)}, v{RG+i}")
    for w in range(1, 8):
        for i in range(4):
            A(f"v_fma_f32 v{TL+2*i}, v{RG+4*w+i}, s{16+8*(i&1)+w}, v{TL+2*i}")
    A("s_nop 1")
    for i in range(4):
        A(f"v_mov_b32_dpp v{TL+8+i}, v{TL+2*i} quad_perm:[1,1,3,3] {DPPM}")
    for i in range(4):
        A(f"v_cvt_pk_bf16_f32 v{TL+2*i}, v{TL+2*i}, v{TL+8+i}")
    A(f"s_mov_b64 exec, s[{sEx}:{sEx+1}]")
    for i in range(4):
        half, h = i >> 1, i & 1
        A(f"buffer_store_dwordx2 {vr(TL+2*i,2)}, v13, {sr(WS_)}, s{sT1} offen offset:{(h*256+128*half)*4} sc1")
    A("s_mov_b64 exec, -1")
    if stamps:
        A("s_memrealtime s[30:31]"); A("s_waitcnt lgkmcnt(0)")
    A(f"s_cmp_lg_u32 s{sW}, 4")
    A("s_cbranch_scc1 L_fin")
    A(f"v_readlane_b32 s16, v11, 0"); A(f"v_readlane_b32 s17, v11, 8")
    A(f"v_readlane_b32 s18, v15, 0"); A(f"v_readlane_b32 s19, v15, 8")
    A(f"v_and_b32 v13, 1, v{vLane}")
    A("v_cmp_eq_u32 vcc, 0, v13")
    A(f"v_mov_b32 v{TL+8}, s17"); A(f"v_mov_b32 v{TL+10}, s19")
    A(f"v_mov_b32 v12, s16"); A(f"v_mov_b32 v14, s18")
    A(f"v_mov_b32 v{TL+9}, s{sTt}")
    A(f"v_mov_b32 v{TL+11}, s{sTt+1}")
    A(f"v_cndmask_b32 v{TL+8}, v{TL+8}, v12, vcc")
    A(f"v_cndmask_b32 v{TL+10}, v{TL+10}, v14, vcc")
    A(f"v_lshlrev_b32 v13, 4, v{vLane}")
    A("s_mov_b64 exec, 0xf")
    A(f"buffer_store_dwordx4 {vr(TL+8)}, v13, {sr(WS_)}, s{sCons} offen offset:2048 sc1")
    A("s_branch L_fin")
    A.lab("L_h2")
    if opt.get("tailcut") == 2: A("s_waitcnt vmcnt(0)"); A("s_branch L_fin")
    A.c("---- H2 consume: wave 0 polls; waves 0..3 project, tau = w")
    vRd, vYr, vH3, vYwB = TL+4, TL+5, TL+6, TL+7
    A(f"v_lshrrev_b32 v11, 1, v{vGq}")
    A(f"v_lshlrev_b32 v11, 9, v11")
    A(f"v_lshlrev_b32 v12, 5, v{vR}")
    A(f"s_lshl_b32 s{sT1}, s{sW}, 10")
    A(f"s_add_u32 s{sT2}, s{sT1}, {L_Y}")
    A(f"v_add3_u32 v{vYwB}, v11, v12, s{sT2}")
    A(f"v_lshlrev_b32 v11, 4, v{vLane}")
    A(f"v_add_u32 v{vYr}, s{sT2}, v11")
    A(f"v_lshrrev_b32 v11, 5, v{vLane}")
    A(f"v_mul_u32_u24 v11, {112*16}, v11")
    A(f"v_and_b32 v12, 31, v{vLane}")
    A(f"v_lshlrev_b32 v12, 4, v12")
    A(f"v_add_u32 v{vH3}, v11, v12")
    A(f"v_lshrrev_b32 v11, 2, v{vLane}")
    A(f"v_mul_u32_u24 v11, {H3_PSTRIDE}, v11")
    A(f"v_and_b32 v12, 3, v{vLane}")
    A(f"v_lshlrev_b32 v12, 4, v12")
    A(f"v_add_u32 v{vRd}, v11, v12")
    A(f"s_mov_b32 s{sA0}, 0x0000ffff"); A(f"s_mov_b32 s{sA1}, 0x0000ffff")
    A(f"s_cmp_eq_u32 s{sW}, 3")
    A(f"s_cselect_b32 s{sEx}, 0xffff, -1")
    A(f"s_cselect_b32 s{sEx+1}, 0xffff, -1")
    A(f"s_cmp_lg_u32 s{sW}, 0")
    A("s_cbranch_scc1 L_h2wait")
    A(f"s_mul_i32 s{sT1}, s{sG}, {16*H2_PSTRIDE}")
    A(f"s_add_u32 s{sT1}, s{sT1}, {H2_OFF}")
    A(f"s_lshl_b32 s{sT2}, s{sB}, 4")
    A(f"s_add_u32 s{sT2}, s{sT2}, s{sT1}")
    A(f"s_lshl_b32 s{sT0}, s{sJ}, 7")
    A(f"s_add_u32 s{sT1}, s{sT1}, s{sT0}")
    A(f"v_mul_u32_u24 v11, {H2_PSTRIDE}, v{vR}")
    A(f"v_lshlrev_b32 v12, 5, v{vGq}")
    A("v_add_u32 v12, v11, v12")
    A(f"s_mov_b32 s{sSpin}, 0")
    def h2issue():
        for k in range(2):
            A(f"buffer_load_dwordx4 {vr(F+4*k)}, v12, {sr(WS_)}, s{sT1} offen offset:{16*k} sc1")
        A(f"buffer_load_dwordx4 {vr(F+8)}, v11, {sr(WS_)}, s{sT2} offen offset:2048 sc1")
    A("s_waitcnt vmcnt(0)")
    wo_perm()
    if stamps:
        A("s_memrealtime s[28:29]"); A("s_waitcnt lgkmcnt(0)")
    A.lab("L_h2poll")
    h2issue()
    A("s_waitcnt vmcnt(0)")
    tag_check(F, 3, 13, 14)
    A("s_cbranch_vccz L_h2got")
    if opt.get("sl2", 0): A(f"s_sleep {opt['sl2']}")
    A(f"s_add_u32 s{sSpin}, s{sSpin}, 1")
    A(f"s_cmp_lt_u32 s{sSpin}, {maxspin}")
    A("s_cbranch_scc1 L_h2poll")
    A.lab("L_h2got")
    tst(1)
    if stamps: A(f"s_mov_b32 s41, s{sSpin}")
    mreg, lreg = F+8, F+10
    O = F + 12
    A(f"v_mov_b32 v13, v{mreg}")
    for k in range(4):
        A(f"v_lshlrev_b32 v{O+2*k}, 16, v{F+2*k}")
        A(f"v_and_b32 v{O+2*k+1}, 0xffff0000, v{F+2*k}")
    for ctl in RED8:
        A(f"v_max_f32_dpp v13, v13, v13 {ctl} {DPPM}")
        A("s_nop 1")
    A(f"v_sub_f32 v13, v{mreg}, v13")
    A(f"v_mul_f32 v13, s{sC}, v13")
    A("v_exp_f32 v13, v13")
    A("s_nop 0")
    A(f"v_mul_f32 v14, v13, v{lreg}")
    for k in range(8):
        A(f"v_mul_f32 v{O+k}, v13, v{O+k}")
    for ctl in RED8:
        A(f"v_add_f32_dpp v14, v14, v14 {ctl} {DPPM}")
        for k in range(8):
            A(f"v_add_f32_dpp v{O+k}, v{O+k}, v{O+k} {ctl} {DPPM}")
    A(f"v_cmp_gt_u32 vcc, 8, v{vR}")
    A("v_rcp_f32 v14, v14")
    A("s_waitcnt lgkmcnt(0)")
    A(f"v_cndmask_b32 v15, v{GT+1}, v{GT}, vcc")
    A("v_mul_f32 v14, v14, v15")
    for k in range(8):
        A(f"v_mul_f32 v{O+k}, v14, v{O+k}")
    for i in range(4):
        A(f"v_cvt_pk_bf16_f32 v{AF+i}, v{O+2*i}, v{O+2*i+1}")
    A(f"v_lshlrev_b32 v11, 4, v{vLane}")
    A(f"ds_write_b128 v11, {vr(AF)} offset:{L_QF}")
    A("s_waitcnt lgkmcnt(0)")
    A("s_barrier")
    A("s_branch L_h2go")
    A.lab("L_h2wait")
    A("s_waitcnt vmcnt(0)")
    wo_perm()
    A(f"v_lshlrev_b32 v11, 4, v{vLane}")
    A("s_barrier")
    A(f"ds_read_b128 {vr(AF)}, v11 offset:{L_QF}")
    A("s_waitcnt lgkmcnt(0)")
    A.lab("L_h2go")
    for e in range(8):
        A(f"v_mfma_f32_16x16x32_bf16 {vr(ACC+4*e)}, {vr(AF)}, {vr(KA+4*e)}, 0")
    A(f"s_mul_i32 s{sT1}, s2, {H3_PSTRIDE}")
    A(f"s_lshl_b32 s{sT2}, s{sW}, 9")
    A(f"s_add_u32 s{sT1}, s{sT1}, s{sT2}")
    A(f"s_add_u32 s{sT1}, s{sT1}, {H3_OFF}")
    A(f"v_mov_b32 v{F+1}, s{sTt}"); A(f"v_mov_b32 v{F+3}, s{sTt+1}")
    A(f"s_mov_b64 exec, s[{sA0}:{sA1}]")
    A("s_nop 3")
    for e in range(0, 8, 2):
        A(f"ds_write2_b32 v{vYwB}, v{ACC+4*e}, v{ACC+4*(e+1)} offset0:{e} offset1:{e+1}")
    A("s_mov_b64 exec, -1")
    A("s_waitcnt lgkmcnt(0)")
    A(f"ds_read_b128 {vr(F+8)}, v{vYr}")
    A("s_waitcnt lgkmcnt(0)")
    A(f"v_cvt_pk_bf16_f32 v{F}, v{F+8}, v{F+9}")
    A(f"v_cvt_pk_bf16_f32 v{F+2}, v{F+10}, v{F+11}")
    A(f"s_mov_b64 exec, s[{sEx}:{sEx+1}]")
    A(f"buffer_store_dwordx4 {vr(F)}, v{vH3}, {sr(WS_)}, s{sT1} offen sc1")
    A("s_mov_b64 exec, -1")
    tst(2)
    if opt.get("tailcut") == 3: A("s_branch L_fin")
    A(f"s_cmp_ge_u32 s2, {NRED}")
    A("s_cbranch_scc1 L_fin")
    A(f"s_lshl_b32 s{sT1}, s2, 6")
    A(f"s_mul_i32 s{sT2}, s{sW}, {64*H3_PSTRIDE}")
    A(f"s_add_u32 s{sT1}, s{sT1}, s{sT2}")
    A(f"s_add_u32 s{sT1}, s{sT1}, {H3_OFF}")
    A(f"s_mov_b32 s{sSpin}, 0")
    A.lab("L_h3poll")
    A(f"s_mov_b32 s{sT2}, s{sT1}")
    for k in range(4):
        A(f"buffer_load_dwordx4 {vr(H+4*k)}, v{vRd}, {sr(WS_)}, s{sT2} offen sc1")
        if k < 3: A(f"s_add_u32 s{sT2}, s{sT2}, {16*H3_PSTRIDE}")
    A("s_waitcnt vmcnt(0)")
    tag_check(H, 4, 13, 14)
    A("s_cbranch_vccz L_h3got")
    if opt.get("sl3", 0): A(f"s_sleep {opt['sl3']}")
    A(f"s_add_u32 s{sSpin}, s{sSpin}, 1")
    A(f"s_cmp_lt_u32 s{sSpin}, {maxspin}")
    A("s_cbranch_scc1 L_h3poll")
    A.lab("L_h3got")
    tst(3)
    if stamps: A(f"s_mov_b32 s42, s{sSpin}")
    Y = H + 16
    for k in range(4):
        for half in range(2):
            d = H + 4*k + 2*half
            lo, hi = Y + 2*half, Y + 2*half + 1
            if k == 0:
                A(f"v_lshlrev_b32 v{lo}, 16, v{d}")
                A(f"v_and_b32 v{hi}, 0xffff0000, v{d}")
            else:
                A(f"v_lshlrev_b32 v13, 16, v{d}")
                A(f"v_and_b32 v14, 0xffff0000, v{d}")
                A(f"v_add_f32 v{lo}, v{lo}, v13")
                A(f"v_add_f32 v{hi}, v{hi}, v14")
    A("s_nop 1")
    allreduce_add([Y, Y+1, Y+2, Y+3], [Y+4, Y+5, Y+6, Y+7], ["row_ror:4", "row_ror:8"])
    A(f"s_lshl_b32 s{sT1}, s{sW}, 6")
    A(f"v_lshlrev_b32 v11, 4, v{vLane}")
    A(f"v_add_u32 v12, s{sT1}, v11")
    A("s_mov_b64 exec, 0xf")
    A(f"ds_write_b128 v12, {vr(Y)} offset:{L_Y2}")
    A("s_waitcnt lgkmcnt(0)")
    A("s_barrier")
    A(f"s_cmp_lg_u32 s{sW}, 0")
    A("s_cbranch_scc1 L_fin")
    for w in range(4):
        A(f"ds_read_b128 {vr(Y+8+4*w)}, v11 offset:{L_Y2+64*w}")
    A("s_waitcnt lgkmcnt(0)")
    for i in range(4):
        A(f"v_add_f32 v{Y+8+i}, v{Y+8+i}, v{Y+12+i}")
        A(f"v_add_f32 v{Y+16+i}, v{Y+16+i}, v{Y+20+i}")
    for i in range(4):
        A(f"v_add_f32 v{Y+8+i}, v{Y+8+i}, v{Y+16+i}")
    A(f"v_cvt_pk_bf16_f32 v{Y+8}, v{Y+8}, v{Y+9}")
    A(f"v_cvt_pk_bf16_f32 v{Y+9}, v{Y+10}, v{Y+11}")
    A(f"s_lshl_b32 s{sT1}, s2, 5")
    A(f"v_lshlrev_b32 v11, 3, v{vLane}")
    A(f"buffer_store_dwordx2 {vr(Y+8,2)}, v11, {sr(OUT_)}, s{sT1} offen")
    A.lab("L_fin")
    if stamps:
        A("s_mov_b64 exec, -1")
        A(f"s_memrealtime s[{sTs+6}:{sTs+7}]")
        A("s_waitcnt lgkmcnt(0)")
        rec_store(sTs, 8, DBG_OFF, 5, RING)
        rec_store(32, 8, DBG_OFF + 0x60000, 6, RING)
        A("s_mov_b32 s32, s41"); A("s_mov_b32 s33, 0"); A("s_mov_b32 s34, s42"); A("s_mov_b32 s35, 0")
        for k in range(4): A(f"s_mov_b32 s{36+k}, s{28+k}")
        rec_store(32, 8, DBG_OFF + 0x60000 + 32, 6, RING)
    A.lab("L_end")
    A("s_endpgm")

    out = [HEADER.rstrip("\n"),
           "; Override launch geometry by editing the next line (default: block=256,",
           "; grid=ceil(out_elems/256), lds=0). Harness parses it; keep it on one line.",
           f"; @launch grid=(256,1,1) block=(512,1,1) lds={LDS_BYTES}",
           '.amdgcn_target "amdgcn-amd-amdhsa--gfx950"', ".text", f".globl {KNAME}", ".p2align 8",
           f".type {KNAME},@function", f"{KNAME}:"]
    body = [l for l in A.L if l is not None]
    if any("CPF_DELTA" in l for l in body):
        k = next(i for i, l in enumerate(body) if "s_getpc_b64" in l)
        body.insert(k + 1, "L_after_getpc:")
        body = [l.replace("CPF_DELTA", f"(L_after_getpc-{KNAME})") for l in body]
    out += body
    out += ['.section .rodata,"a"', ".p2align 6", f".amdhsa_kernel {KNAME}",
            "  .amdhsa_next_free_vgpr 256", "  .amdhsa_next_free_sgpr 102", "  .amdhsa_accum_offset 256",
            "  .amdhsa_group_segment_fixed_size 0", "  .amdhsa_kernarg_size 112", "  .amdhsa_user_sgpr_count 2",
            "  .amdhsa_user_sgpr_kernarg_segment_ptr 1", "  .amdhsa_system_sgpr_workgroup_id_x 1", ".end_amdhsa_kernel"]
    return "\n".join(out) + "\n"

if __name__ == "__main__":
    ap = argparse.ArgumentParser()
    ap.add_argument("-o", default="gated_mix__gqa_block_cached__gqa_block_cached__decode.s")
    ap.add_argument("--stamps", type=int, nargs="?", const=1, default=0)
    ap.add_argument("--nt", default="nt")
    ap.add_argument("--opt", default="")
    a = ap.parse_args()
    open(a.o, "w").write(gen(stamps=a.stamps, nt=a.nt, opt=eval("dict(%s)" % a.opt)))
    print("wrote", a.o)
```

```python
import sys, argparse, struct

KNAME = "gated_mix__gqa_block_cached__gqa_block_cached__decode_kernel"
HEADER = open("gated_mix__gqa_block_cached__gqa_block_cached__decode.s.ref").read().split("; Override launch")[0]

QBUF_OFF = 0x0
CNT_OFF  = 0x14000
H2_OFF   = 0x20000
H2_PSTRIDE = 2176
H3_OFF   = 0x200000
H3_PSTRIDE = 3584
DBG_OFF  = 0x400000
WS_BYTES = 0x800000
NRED = 56

L_QP  = 0
L_QF  = 4096
L_ML  = L_QF + 1024
L_GATE = L_ML + 128
L_FLAG = L_GATE + 16
L_Y2  = L_GATE + 64
L_ACC = 6144
L_Y   = L_ACC + 16384
LDS_BYTES = 96 * 1024

C_SCALE = 1.4426950408889634 / 16.0
def f2u(f): return struct.unpack("<I", struct.pack("<f", f))[0]

class G:
    def __init__(s): s.L = []
    def __call__(s, t): s.L.append("    " + t)
    def lab(s, t): s.L.append(t + ":")
    def c(s, t): s.L.append("    ; " + t)

def vr(a, n=4): return f"v[{a}:{a+n-1}]"
def sr(a, n=4): return f"s[{a}:{a+n-1}]"
DPPM = "row_mask:0xf bank_mask:0xf"
RED8 = ("quad_perm:[1,0,3,2]", "quad_perm:[2,3,0,1]", "row_half_mirror")

def gen(stamps=False, nt="nt", maxspin=400000, opt=None):
    opt = opt or {}
    NS = opt.get("ns", 32)
    A = G()
    sG, sJ, sB, sSP, sBR, sKVH, sW = 3, 4, 5, 6, 7, 8, 9
    sO, sO2 = 10, 11
    sBase = 12
    sT0, sT1, sT2 = 14, 15, 88
    K_, V_, WQ_, WO_, WS_, X_, GW_, OUT_, DB_ = 44, 48, 52, 56, 60, 64, 68, 72, 76
    sSelLo, sSelHi, sC = 80, 81, 82
    sM2 = 84
    sA0, sA1 = 86, 87
    sSpin = 89
    sEx = 90
    sTs = 92
    sNon = 101
    sCons = 13
    sTt = 10
    sTC = 83
    sStep = 100
    sCnt = 13
    sCB = 86
    sXp = 87
    sB7, sB8 = 40, 41
    vLane, vR, vGq, vKoff, vVoff, vM, vLs, vMsk = 2, 3, 4, 5, 6, 8, 9, 10
    RING = 16
    F = 144
    D = F
    ACC = 176
    QB = 208
    SA = 216
    TT = ACC + 8
    TL = SA
    PX = ACC
    AF = QB
    KA, H, WR, RG = RING, RING + 32, RING + 64, RING

    def tst(k):
        if stamps:
            A(f"s_memrealtime s[{32+2*k}:{33+2*k}]"); A("s_waitcnt lgkmcnt(0)")
    def xst(k):
        if stamps:
            A(f"s_memrealtime s[{16+2*k}:{17+2*k}]"); A("s_waitcnt lgkmcnt(0)")
    def rec_store(first_sgpr, n, off, lg, tmp, wait=True):
        A("s_mov_b64 exec, 1")
        A(f"s_lshl_b32 s{sT1}, s2, 3"); A(f"s_add_u32 s{sT1}, s{sT1}, s{sW}")
        A(f"s_lshl_b32 s{sT1}, s{sT1}, {lg}"); A(f"s_add_u32 s{sT1}, s{sT1}, {off}")
        for k in range(n): A(f"v_mov_b32 v{tmp+k}, s{first_sgpr+k}")
        for k in range(0, n, 4):
            A(f"buffer_store_dwordx4 v[{tmp+k}:{tmp+k+3}], off, {sr(WS_)}, s{sT1} offset:{4*k}")
        if wait: A("s_waitcnt vmcnt(0)")
        A("s_mov_b64 exec, -1")

    A.c("entry")
    A("s_cmp_ge_u32 s2, 256")
    A("s_cbranch_scc1 L_end")
    A(f"s_memrealtime s[{sTs}:{sTs+1}]")
    A("s_load_dwordx16 s[16:31], s[0:1], 0")
    A("s_load_dwordx8 s[32:39], s[0:1], 64")
    A("s_load_dwordx4 s[40:43], s[0:1], 96")
    A("v_lshrrev_b32 v1, 6, v0")
    A(f"v_and_b32 v{vLane}, 63, v0")
    A(f"v_readfirstlane_b32 s{sW}, v1")
    A(f"s_bfe_u32 s{sT1}, s2, 0x20006")
    A(f"s_lshl_b32 s{sG}, s{sT1}, 2")
    A(f"s_bfe_u32 s{sT1}, s2, 0x20001")
    A(f"s_add_u32 s{sG}, s{sG}, s{sT1}")
    A(f"s_bfe_u32 s{sB}, s2, 0x10005")
    A(f"s_bfe_u32 s{sT1}, s2, 0x20003")
    A(f"s_lshl_b32 s{sSP}, s{sT1}, 1")
    A(f"s_and_b32 s{sT1}, s2, 1")
    A(f"s_add_u32 s{sSP}, s{sSP}, s{sT1}")
    A(f"s_lshr_b32 s{sBR}, s{sG}, 3")
    A(f"s_and_b32 s{sKVH}, s{sG}, 7")
    A(f"s_lshl_b32 s{sJ}, s{sB}, 3")
    A(f"s_add_u32 s{sJ}, s{sJ}, s{sSP}")
    A(f"s_and_b32 s{sCB}, s2, 1")
    A(f"s_lshl_b32 s{sCB}, s{sCB}, 3")
    A(f"s_lshl_b32 s{sT1}, s{sB}, 2")
    A(f"s_add_u32 s{sCB}, s{sCB}, s{sT1}")
    A(f"s_lshr_b32 s{sT1}, s{sSP}, 1")
    A(f"s_add_u32 s{sCB}, s{sCB}, s{sT1}")
    A(f"v_and_b32 v{vR}, 15, v{vLane}")
    A(f"v_lshrrev_b32 v{vGq}, 4, v{vLane}")
    A(f"v_lshrrev_b32 v11, 2, v{vR}")
    A(f"v_lshlrev_b32 v11, 9, v11")
    A(f"v_and_b32 v12, 3, v{vR}")
    A(f"v_lshlrev_b32 v12, 4, v12")
    A(f"v_lshlrev_b32 v13, 6, v{vGq}")
    A(f"v_add3_u32 v{vKoff}, v11, v12, v13")
    A(f"v_lshlrev_b32 v11, 9, v{vGq}")
    A(f"v_lshlrev_b32 v12, 4, v{vR}")
    A(f"v_add_u32 v{vVoff}, v11, v12")
    A(f"s_mov_b32 s{sSelLo}, 0x05040100")
    A(f"s_mov_b32 s{sSelHi}, 0x07060302")
    A(f"s_mov_b32 s{sC}, {f2u(C_SCALE):#x}")
    A(f"s_mov_b32 s{sTC}, 0x9E3779B9")
    A(f"s_mov_b32 s{sM2}, 0x00030003")
    A(f"s_mov_b32 s{sM2+1}, 0x00030003")
    A(f"v_cndmask_b32 v{vMsk}, 0, -1, s[{sM2}:{sM2+1}]")
    A(f"s_lshr_b32 s{sBase}, s{sSP}, 1")
    A(f"s_lshl_b32 s{sBase}, s{sBase}, 7")
    A(f"s_add_u32 s{sBase}, s{sBase}, s{sW}")
    A(f"s_and_b32 s{sT1}, s{sSP}, 1")
    A(f"s_mul_i32 s{sT1}, s{sT1}, 96")
    A(f"s_add_u32 s{sBase}, s{sBase}, s{sT1}")
    A(f"s_getreg_b32 s{sXp}, hwreg(HW_REG_XCC_ID, 0, 1)")
    A(f"s_lshl_b32 s{sT1}, s{sB}, 3")
    A(f"s_add_u32 s{sT1}, s{sT1}, s{sKVH}")
    A(f"s_lshl_b32 s{sT1}, s{sT1}, 22")
    A("s_waitcnt lgkmcnt(0)")
    A(f"s_cmp_eq_u32 s{sBR}, 0")
    for (srd, a, b_) in ((WQ_, 22, 32), (K_, 18, 28), (V_, 20, 30), (WO_, 24, 34)):
        A(f"s_cselect_b32 s{srd}, s{a}, s{b_}")
        A(f"s_cselect_b32 s{srd+1}, s{a+1}, s{b_+1}")
    for srd in (K_, V_):
        A(f"s_add_u32 s{srd}, s{srd}, s{sT1}")
        A(f"s_addc_u32 s{srd+1}, s{srd+1}, 0")
        A(f"s_mov_b32 s{srd+2}, 0x400000")
        A(f"s_mov_b32 s{srd+3}, 0x20000")
    for srd in (WQ_, WO_):
        A(f"s_mov_b32 s{srd+2}, {448*4096*2}")
        A(f"s_mov_b32 s{srd+3}, 0x20000")
    for (srd, a, n) in ((WS_, 42, WS_BYTES), (X_, 16, 1792), (GW_, 36, 896), (OUT_, 38, 1792), (DB_, 40, 256)):
        A(f"s_mov_b32 s{srd}, s{a}")
        A(f"s_mov_b32 s{srd+1}, s{a+1}")
        A(f"s_mov_b32 s{srd+2}, {n}")
        A(f"s_mov_b32 s{srd+3}, 0x20000")

    NA = 9
    NLD = 16 * NA
    def tile_off(n):
        A(f"s_add_u32 s{sO}, s{sBase if n < 4 else sStep}, {8*n}")
        A(f"s_lshl_b32 s{sO}, s{sO}, 13")
        if n >= 7:
            A(f"s_add_u32 s{sO2}, s{sW}, {8*n}")
            A(f"s_cmp_lt_u32 s{sO2}, s{sCnt}")
            A(f"s_cselect_b32 s{sO}, s{sO}, 0x400000")
        A(f"s_add_u32 s{sO2}, s{sO}, 4096")
    def slot(i): return RING + 4 * (i % NS)
    def issue(i):
        if i >= NLD: return
        j = i & 7
        if j == 0: tile_off((i >> 3) % NA)
        if i < 8 * NA:
            g_, hf = j >> 1, j & 1
            so = sO if g_ < 2 else sO2
            A(f"buffer_load_dwordx4 {vr(slot(i))}, v{vKoff}, {sr(K_)}, s{so} offen offset:{(g_&1)*2048+hf*256} {nt}")
        else:
            hf, jp = j >> 2, j & 3
            so = sO if jp < 2 else sO2
            A(f"buffer_load_dwordx4 {vr(slot(i))}, v{vVoff}, {sr(V_)}, s{so} offen offset:{(jp&1)*2048+hf*256} {nt}")
    def prefetch(lo, hi):
        for i in range(lo, hi): issue(i)
    def wo_loads():
        A(f"s_lshl_b32 s{sT1}, s{sKVH}, 9")
        A(f"s_lshl_b32 s{sT2}, s{sJ}, 5")
        A(f"s_add_u32 s{sT1}, s{sT1}, s{sT2}")
        A(f"s_mul_i32 s{sT1}, s{sT1}, 896")
        A(f"s_lshl_b32 s{sT2}, s{sW}, 8")
        A(f"s_add_u32 s{sT1}, s{sT1}, s{sT2}")
        A(f"v_mul_u32_u24 v11, {8*896}, v{vGq}")
        A(f"v_lshlrev_b32 v12, 4, v{vR}")
        A(f"v_add_u32 v15, v11, v12")
        for jj in range(8):
            A(f"buffer_load_dwordx4 {vr(WR+4*jj)}, v15, {sr(WO_)}, s{sT1} offen {nt}")
            if jj < 7: A(f"s_add_u32 s{sT1}, s{sT1}, 896")
    def wo_perm():
        for i in range(4):
            for d in range(4):
                A(f"v_perm_b32 v{KA+4*(2*d)+i}, v{WR+4*(2*i+1)+d}, v{WR+4*(2*i)+d}, s{sSelLo}")
                A(f"v_perm_b32 v{KA+4*(2*d+1)+i}, v{WR+4*(2*i+1)+d}, v{WR+4*(2*i)+d}, s{sSelHi}")
    def allreduce_add(regs, tmp, ctls):
        for ctl in ctls:
            for r_ in regs:
                A(f"v_add_f32_dpp v{r_}, v{r_}, v{r_} {ctl} {DPPM}")
            A("s_nop 1")
        for sw in ("v_permlane16_swap_b32", "v_permlane32_swap_b32"):
            for r_, t_ in zip(regs, tmp): A(f"v_mov_b32 v{t_}, v{r_}")
            A("s_nop 1")
            for r_, t_ in zip(regs, tmp): A(f"{sw} v{r_}, v{t_}")
            A("s_nop 1")
            for r_, t_ in zip(regs, tmp): A(f"v_add_f32 v{r_}, v{r_}, v{t_}")
            A("s_nop 1")

    def tag_check(r, npairs, acc, tmp):
        for k in range(npairs):
            ta, tb = r + 4*k + 1, r + 4*k + 3
            A(f"v_xor_b32 v{tmp}, v{ta}, v{tb}")
            A(f"v_xor_b32 v{tmp}, s{sTC}, v{tmp}")
            A(f"v_subrev_u32 v{ta}, s{sNon}, v{ta}")
            A(f"v_lshrrev_b32 v{ta}, 24, v{ta}")
            if k == 0: A(f"v_or_b32 v{acc}, v{tmp}, v{ta}")
            else: A(f"v_or3_b32 v{acc}, v{acc}, v{tmp}, v{ta}")
        A(f"v_cmp_ne_u32 vcc, 0, v{acc}")
    E1 = opt.get("e1", 16)
    if opt.get("cpf"):
        A(f"s_cmp_lg_u32 s{sW}, {opt.get('cpfw', 7)}")
        A("s_cbranch_scc1 L_nocpf")
        A("s_getpc_b64 s[40:41]")
        A("L_pc0:".replace(":", "") and "s_nop 0")
        A(f"s_sub_u32 s40, s40, CPF_DELTA")
        A("s_subb_u32 s41, s41, 0")
        A(f"v_lshlrev_b32 v11, 4, v{vLane}")
        for k in range(opt["cpf"]):
            A(f"global_load_dwordx4 v[{ACC+4*(k%8)}:{ACC+4*(k%8)+3}], v11, s[40:41]")
            A("v_add_u32 v11, 1024, v11")
        A("s_waitcnt vmcnt(0)") if opt.get("cpfwait") else None
        A.lab("L_nocpf")
    if opt.get("pure"):
        A(f"s_mov_b32 s{sCnt}, 64")
        prefetch(0, NS)
        A("s_branch L_main")
    A(f"s_cmp_eq_u32 s{sW}, 0")
    A("s_cbranch_scc1 L_helper")
    A(f"s_cmp_lt_u32 s{sW}, %d" % (1 if opt.get("nowq") else 5))
    A("s_cbranch_scc1 L_qproj")
    A("s_barrier")
    prefetch(0, E1)
    A("s_barrier")
    if opt.get("stage"): A("s_barrier")
    prefetch(E1, NS)
    A("s_branch L_qwait")
    A.lab("L_qproj")
    A.c("---- waves 1..4: q-proj partial (128 rows each)")
    A(f"s_sub_u32 s{sT0}, s{sW}, 1")
    A(f"v_lshrrev_b32 v11, 2, v{vLane}")
    A(f"v_and_b32 v12, 3, v{vLane}")
    A(f"s_lshl_b32 s{sT1}, s{sT0}, 7")
    A(f"v_lshlrev_b32 v11, 3, v11")
    A(f"v_add_u32 v11, s{sT1}, v11")
    A(f"v_lshlrev_b32 v13, 1, v11")
    A(f"v_lshlrev_b32 v11, 13, v11")
    A(f"v_lshlrev_b32 v12, 4, v12")
    A(f"v_add_u32 v14, v11, v12")
    A(f"s_lshl_b32 s{sT1}, s{sKVH}, 10")
    A(f"s_lshl_b32 s{sT2}, s{sCB}, 6")
    A(f"s_add_u32 s{sT1}, s{sT1}, s{sT2}")
    QW = RING
    wqnt = nt if opt.get("wqnt", 1) else opt.get("wqpol", "")
    for jj in range(8):
        A(f"buffer_load_dwordx4 {vr(QW+4*jj)}, v14, {sr(WQ_)}, s{sT1} offen {wqnt}")
        if jj < 7: A(f"s_add_u32 s{sT1}, s{sT1}, 8192")
    A(f"buffer_load_dwordx4 {vr(PX)}, v13, {sr(X_)}, 0 offen")
    A(f"buffer_load_dwordx4 {vr(PX+4)}, v13, {sr(X_)}, 0 offen offset:896")
    A("s_barrier")
    QA = F
    for k in range(16): A(f"v_mov_b32 v{QA+k}, 0")
    A("s_waitcnt vmcnt(0)")
    xst(0)
    for a in range(4):
        for d in range(4):
            A(f"v_perm_b32 v{TT+2*d}, v{QW+4*(2*a+1)+d}, v{QW+4*(2*a)+d}, s{sSelLo}")
            A(f"v_perm_b32 v{TT+2*d+1}, v{QW+4*(2*a+1)+d}, v{QW+4*(2*a)+d}, s{sSelHi}")
        for b_ in range(2):
            for cc in range(8):
                A(f"v_dot2_f32_bf16 v{QA+8*b_+cc}, v{TT+cc}, v{PX+4*b_+a}, v{QA+8*b_+cc}")
    A("s_nop 3")
    for ctl in ("row_ror:4", "row_ror:8"):
        for k in range(16):
            A(f"v_add_f32_dpp v{QA+k}, v{QA+k}, v{QA+k} {ctl} {DPPM}")
    A("s_nop 1")
    for k in range(0, 16, 2):
        A(f"v_permlane16_swap_b32 v{QA+k}, v{QA+k+1}")
    A("s_nop 1")
    for k in range(0, 16, 2):
        A(f"v_add_f32 v{QA+k}, v{QA+k}, v{QA+k+1}")
    A("s_nop 1")
    for k in range(0, 16, 4):
        A(f"v_permlane32_swap_b32 v{QA+k}, v{QA+k+2}")
    A("s_nop 1")
    for k in range(0, 16, 4):
        A(f"v_add_f32 v{QA+k}, v{QA+k}, v{QA+k+2}")
    A(f"s_lshl_b32 s{sT2}, s{sT0}, 10")
    A(f"v_lshlrev_b32 v11, 2, v{vLane}")
    A(f"v_add_u32 v11, s{sT2}, v11")
    for k in range(4):
        A(f"ds_write_b32 v11, v{QA+4*k} offset:{L_QP+256*k}")
    A("s_waitcnt lgkmcnt(0)")
    xst(1)
    A("s_barrier")
    xst(2)
    if opt.get("stage"): A("s_barrier")
    prefetch(0, NS)
    A.lab("L_qwait")
    xst(3)
    A(f"v_mov_b32 v11, {L_FLAG}")
    A.lab("L_qspin")
    A("ds_read_b32 v12, v11")
    A("s_waitcnt lgkmcnt(0)")
    A(f"v_readfirstlane_b32 s{sCnt}, v12")
    A(f"s_cmp_lg_u32 s{sCnt}, 0")
    A("s_cbranch_scc1 L_main")
    A("s_sleep 1")
    A("s_branch L_qspin")

    A.lab("L_helper")
    A.c("---- wave 0: nonce, gate, q reduce/publish/poll")
    PW = F + 16
    vGN = TL + 16
    A(f"v_lshlrev_b32 v11, 4, v{vLane}")
    A(f"buffer_load_dwordx4 {vr(PX)}, v11, {sr(X_)}, 0 offen")
    A(f"buffer_load_dwordx4 {vr(PX+4)}, v11, {sr(X_)}, 0 offen offset:896")
    A(f"buffer_load_dwordx4 {vr(PW)}, v11, {sr(GW_)}, 0 offen")
    A(f"v_mov_b32 v12, {L_FLAG}")
    A("v_mov_b32 v13, %d" % (64 if opt.get("noq") else 0))
    A("ds_write_b32 v12, v13")
    A("v_mov_b32 v13, 0")
    A("ds_write_b32 v12, v13 offset:4")
    A("s_waitcnt lgkmcnt(0)")
    A("s_barrier")
    A("s_waitcnt vmcnt(0)")
    xst(0)
    A("v_mov_b32 v12, 0"); A("v_mov_b32 v13, 0")
    for d in range(4):
        A(f"v_dot2_f32_bf16 v12, v{PX+d}, v{PW+d}, v12")
        A(f"v_dot2_f32_bf16 v13, v{PX+4+d}, v{PW+d}, v13")
    A("s_nop 3")
    allreduce_add([12, 13], [14, 15], list(RED8) + ["row_mirror"])
    A(f"s_mov_b32 s{sT1}, {f2u(-1.4426950408889634):#x}")
    A(f"s_mov_b32 s{sT2}, {f2u(1.4426950408889634):#x}")
    A(f"s_cmp_eq_u32 s{sBR}, 0")
    A(f"s_cselect_b32 s{sT1}, s{sT1}, s{sT2}")
    A(f"v_mul_f32 v12, s{sT1}, v12"); A(f"v_mul_f32 v13, s{sT1}, v13")
    A("v_exp_f32 v12, v12"); A("v_exp_f32 v13, v13")
    A("s_nop 0")
    A("v_add_f32 v12, 1.0, v12"); A("v_add_f32 v13, 1.0, v13")
    A("v_rcp_f32 v12, v12"); A("v_rcp_f32 v13, v13")
    A(f"v_mov_b32 v11, {L_GATE}")
    A("ds_write_b64 v11, v[12:13]")
    A(f"v_lshrrev_b32 v11, 5, v{vLane}")
    A(f"v_lshlrev_b32 v11, 9, v11")
    A(f"v_bfe_u32 v12, v{vLane}, 2, 1")
    A(f"v_lshlrev_b32 v12, 8, v12")
    A(f"v_and_b32 v13, 3, v{vLane}")
    A(f"v_lshlrev_b32 v13, 6, v13")
    A(f"v_add3_u32 v11, v11, v12, v13")
    A(f"v_bfe_u32 v12, v{vLane}, 3, 2")
    A(f"v_lshlrev_b32 v12, 2, v12")
    A(f"v_add_u32 v11, v11, v12")
    A(f"v_lshrrev_b32 v14, 5, v{vLane}")
    A(f"v_lshlrev_b32 v14, 11, v14")
    A(f"v_and_b32 v12, 31, v{vLane}")
    A(f"v_lshlrev_b32 v12, 2, v12")
    A(f"v_add_u32 v14, v14, v12")
    A(f"v_lshlrev_b32 v15, 5, v{vLane}")
    A(f"s_lshl_b32 s{sT1}, s{sG}, 12")
    A(f"s_lshl_b32 s{sT2}, s{sCB}, 7")
    A(f"s_add_u32 s{sT1}, s{sT1}, s{sT2}")
    A(f"s_lshl_b32 s{sT0}, s{sG}, 12")
    A(f"s_lshl_b32 s{sT2}, s{sB}, 11")
    A(f"s_add_u32 s{sT0}, s{sT0}, s{sT2}")
    A(f"s_mov_b32 s{sEx}, 0x55555555"); A(f"s_mov_b32 s{sEx+1}, 0x55555555")
    A(f"v_bfe_u32 v12, v{vLane}, 1, 1")
    A(f"v_mul_lo_u32 v12, v12, s{sTC}")
    A(f"s_and_b32 s{sT2}, s{sTs}, -2")
    A(f"s_or_b32 s{sT2}, s{sT2}, s{sXp}")
    A(f"v_xor_b32 v{TL+5}, s{sT2}, v12")
    A(f"s_sub_u32 s{sNon}, s{sTs}, 3000")
    A("s_waitcnt lgkmcnt(0)")
    xst(1)
    A("s_barrier")
    xst(2)
    for k in range(4):
        A(f"ds_read_b32 v{TL+k}, v11 offset:{L_QP+1024*k}")
    A("s_waitcnt lgkmcnt(0)")
    A(f"v_add_f32 v{TL}, v{TL}, v{TL+1}")
    A(f"v_add_f32 v{TL+2}, v{TL+2}, v{TL+3}")
    A(f"v_add_f32 v{TL}, v{TL}, v{TL+2}")
    A("s_nop 1")
    A(f"v_mov_b32_dpp v{TL+1}, v{TL} quad_perm:[1,1,3,3] {DPPM}")
    A("s_nop 0")
    A(f"v_cvt_pk_bf16_f32 v{TL+4}, v{TL}, v{TL+1}")
    A(f"s_mov_b64 exec, s[{sEx}:{sEx+1}]")
    A(f"buffer_store_dwordx2 {vr(TL+4,2)}, v14, {sr(WS_)}, s{sT1} offen offset:{QBUF_OFF} sc1")
    A("s_mov_b64 exec, -1")
    xst(3)
    def qpoll(r):
        A(f"buffer_load_dwordx4 {vr(r)}, v15, {sr(WS_)}, s{sT0} offen offset:{QBUF_OFF} sc1")
        A(f"buffer_load_dwordx4 {vr(r+4)}, v15, {sr(WS_)}, s{sT0} offen offset:{QBUF_OFF+16} sc1")
    def qcheck(r, lab):
        tag_check(r, 2, 11, 12)
        A(f"s_cbranch_vccz {lab}")
    PB, PC = F, F + 8
    if opt.get("noq"): A("s_branch L_qgot")
    q1, q2 = opt.get("q1", 8), opt.get("q2", 16)
    if q1: A(f"s_sleep {q1}")
    qpoll(QB)
    if opt.get("stage") == 1: A("s_barrier")
    A(f"s_sleep {q2}")
    qpoll(PB)
    if opt.get("stage") == 2: A("s_barrier")
    A(f"s_sleep {q2}")
    qpoll(PC)
    A("s_waitcnt vmcnt(4)"); qcheck(QB, "L_qgot")
    A("s_waitcnt vmcnt(2)"); qcheck(PB, "L_qgotB")
    A("s_waitcnt vmcnt(0)"); qcheck(PC, "L_qgotC")
    A(f"s_mov_b32 s{sSpin}, 0")
    A.lab("L_qpoll")
    qpoll(QB)
    A("s_waitcnt vmcnt(0)"); qcheck(QB, "L_qgot")
    A(f"s_add_u32 s{sSpin}, s{sSpin}, 1")
    A(f"s_cmp_lt_u32 s{sSpin}, {maxspin}")
    A("s_cbranch_scc1 L_qpoll")
    A("s_branch L_qgot")
    A.lab("L_qgotB")
    for k in range(8): A(f"v_mov_b32 v{QB+k}, v{PB+k}")
    A("s_branch L_qgot")
    A.lab("L_qgotC")
    for k in range(8): A(f"v_mov_b32 v{QB+k}, v{PC+k}")
    A.lab("L_qgot")
    xst(4)
    DLT = opt.get("delta", 4)
    A(f"s_xor_b32 s{sT1}, s{sCB}, 8")
    A(f"s_lshl_b32 s{sT1}, s{sT1}, 2")
    A("s_nop 3")
    A(f"v_readlane_b32 s{sT2}, v{QB+3}, s{sT1}")
    A(f"s_xor_b32 s{sT2}, s{sT2}, s{sTC}")
    A(f"s_and_b32 s{sT2}, s{sT2}, 1")
    A(f"s_sub_u32 s{sT2}, s{sT2}, s{sXp}")
    A(f"s_mul_i32 s{sT2}, s{sT2}, {DLT}")
    A(f"s_add_u32 s{sCnt}, s{sT2}, 64")
    if opt.get("noq"): A(f"s_mov_b32 s{sCnt}, 64")
    A(f"v_mov_b32 v{QB+1}, v{QB+2}")
    A(f"v_mov_b32 v{QB+2}, v{QB+4}")
    A(f"v_mov_b32 v{QB+3}, v{QB+6}")
    A(f"v_lshlrev_b32 v11, 4, v{vLane}")
    A(f"ds_write_b128 v11, {vr(QB)} offset:{L_QF}")
    A(f"v_mov_b32 v11, {L_GATE}")
    A(f"s_add_u32 s{sCnt}, s{sT1}, 0") if False else None
    A(f"v_mov_b32 v13, s{sCnt}")
    A("s_waitcnt lgkmcnt(0)")
    A(f"ds_write_b32 v11, v13 offset:{L_FLAG-L_GATE}")
    A("s_waitcnt vmcnt(0)")
    prefetch(0, NS)
    xst(5)

    A.lab("L_main")
    nst = 0
    if stamps == 1:
        rec_store(16, 12, DBG_OFF + 0x20000, 6, TL, wait=False); nst = 3
    A(f"v_and_b32 v11, 1, v{vR}")
    A(f"v_lshlrev_b32 v11, 9, v11")
    A(f"v_bfe_u32 v12, v{vR}, 1, 2")
    A(f"v_lshlrev_b32 v12, 4, v12")
    A(f"v_lshlrev_b32 v13, 6, v{vGq}")
    A(f"v_add3_u32 v11, v11, v12, v13")
    A(f"ds_read_b128 {vr(QB)}, v11 offset:{L_QF}")
    A(f"ds_read_b128 {vr(QB+4)}, v11 offset:{L_QF+256}")
    A(f"s_and_b32 s{sT1}, s{sSP}, 1")
    A(f"s_mul_i32 s{sT1}, s{sT1}, s{sCnt}")
    A(f"s_sub_u32 s{sStep}, s{sBase}, s{sT1}")
    for n_, sb in ((7, sB7), (8, sB8)):
        A(f"s_add_u32 s{sT1}, s{sW}, {8*n_}")
        A(f"s_cmp_lt_u32 s{sT1}, s{sCnt}")
        A(f"s_cselect_b32 s{sb}, 0, 0xff7fffff")
    A("s_waitcnt lgkmcnt(0)")
    if stamps:
        A(f"s_memrealtime s[{sTs+2}:{sTs+3}]")
    nocomp = opt.get("nocomp")
    log = list(range(NS)) + ["x"] * nst
    def wait_for(i):
        k = log.index(i)
        A(f"s_waitcnt vmcnt({min(63, len(log) - 1 - k)})")
    nxt = NS
    def issue_next():
        nonlocal nxt
        if nxt < NLD:
            issue(nxt); log.append(nxt); nxt += 1
    for n in range(NA):
        for j in range(8):
            i = 8 * n + j
            g_, hf = j >> 1, j & 1
            wait_for(i)
            c_ = "0" if hf == 0 else vr(D+4*g_)
            if not nocomp:
                A(f"v_mfma_f32_16x16x32_bf16 {vr(D+4*g_)}, {vr(slot(i))}, {vr(QB+4*hf)}, {c_}")
            issue_next()
        if stamps and n in (1, 3, 7): A(f"s_memrealtime s[{16+2*{1:0,3:1,7:2}[n]}:{17+2*{1:0,3:1,7:2}[n]}]")
        if nocomp: continue
        Sn = SA + 4 * n
        for g_ in range(3):
            A(f"v_add_f32_dpp v{TT+2*g_}, v{D+4*g_+1}, v{D+4*g_+0} row_shl:2 {DPPM} bound_ctrl:0")
            A(f"v_add_f32_dpp v{TT+2*g_+1}, v{D+4*g_+3}, v{D+4*g_+2} row_shl:2 {DPPM} bound_ctrl:0")
        A("s_nop 3")
        A(f"v_add_f32_dpp v{TT+6}, v{D+13}, v{D+12} row_shl:2 {DPPM} bound_ctrl:0")
        A(f"v_add_f32_dpp v{TT+7}, v{D+15}, v{D+14} row_shl:2 {DPPM} bound_ctrl:0")
        for g_ in range(3):
            A(f"v_add_f32_dpp v{Sn+g_}, v{TT+2*g_+1}, v{TT+2*g_} row_shl:4 {DPPM} bound_ctrl:0")
        A(f"v_add_f32_dpp v{Sn+3}, v{TT+7}, v{TT+6} row_shl:4 {DPPM} bound_ctrl:0")
        if n >= 7:
            for g_ in range(4):
                A(f"v_add_f32 v{Sn+g_}, s{sB7 if n == 7 else sB8}, v{Sn+g_}")
    for k in range(32): A(f"v_mov_b32 v{ACC+k}, 0")
    if not nocomp:
        nS = 4 * NA
        A(f"v_max_f32 v11, v{SA}, v{SA+1}")
        A(f"v_max_f32 v12, v{SA+2}, v{SA+3}")
        for k in range(4, nS, 4):
            A(f"v_max3_f32 v11, v11, v{SA+k}, v{SA+k+1}")
            A(f"v_max3_f32 v12, v12, v{SA+k+2}, v{SA+k+3}")
        A("v_max_f32 v11, v11, v12")
        A("v_mov_b32 v12, v11")
        A("s_nop 1")
        A("v_permlane32_swap_b32 v11, v12")
        A("s_nop 1")
        A("v_max_f32 v11, v11, v12")
        A("v_mov_b32 v12, v11")
        A("s_nop 1")
        A("v_permlane16_swap_b32 v11, v12")
        A("s_nop 1")
        A(f"v_max_f32 v{vM}, v11, v12")
        A(f"v_mul_f32 v12, s{sC}, v{vM}")
        for k in range(nS):
            A(f"v_fma_f32 v{SA+k}, v{SA+k}, s{sC}, -v12")
        for k in range(nS):
            A(f"v_exp_f32 v{SA+k}, v{SA+k}")
        A("s_nop 0")
        A(f"v_add_f32 v{vLs}, v{SA}, v{SA+1}")
        A(f"v_add_f32 v13, v{SA+2}, v{SA+3}")
        for k in range(4, nS, 2):
            r_ = vLs if (k >> 1) & 1 == 0 else 13
            A(f"v_add_f32 v11, v{SA+k}, v{SA+k+1}")
            A(f"v_add_f32 v{r_}, v{r_}, v11")
        A(f"v_add_f32 v{vLs}, v{vLs}, v13")
        for n in range(NA):
            Sn = SA + 4 * n
            A(f"v_cvt_pk_bf16_f32 v{Sn}, v{Sn}, v{Sn+1}")
            A(f"v_cvt_pk_bf16_f32 v{Sn+1}, v{Sn+2}, v{Sn+3}")
        for n in range(NA):
            Sn = SA + 4 * n
            A(f"v_and_b32 v{Sn}, v{Sn}, v{vMsk}")
            A(f"v_and_b32 v{Sn+1}, v{Sn+1}, v{vMsk}")
        for n in range(NA):
            Sn = SA + 4 * n
            A(f"v_mov_b32_dpp v{Sn+2}, v{Sn} row_shr:2 {DPPM} bound_ctrl:0")
            A(f"v_mov_b32_dpp v{Sn+3}, v{Sn+1} row_shr:2 {DPPM} bound_ctrl:0")
    for n in range(NA):
        for i2 in range(4):
            i = 8 * NA + 8 * n + 2 * i2
            wait_for(i + 1)
            a_, b_ = slot(i), slot(i + 1)
            for d in range(4 if not nocomp else 0):
                A(f"v_perm_b32 v{F+4*(2*d)+i2}, v{b_+d}, v{a_+d}, s{sSelLo}")
                A(f"v_perm_b32 v{F+4*(2*d+1)+i2}, v{b_+d}, v{a_+d}, s{sSelHi}")
            issue_next(); issue_next()
        if n == opt.get("late", 7):
            A(f"s_cmp_lg_u32 s{sW}, 7")
            A("s_cbranch_scc1 L_nolate")
            A(f"v_mov_b32 v11, {L_FLAG}")
            A("v_mov_b32 v12, 1")
            A("ds_write_b32 v11, v12 offset:4")
            A.lab("L_nolate")
        if stamps and n in (1, 3, 5): A(f"s_memrealtime s[{16+2*{1:3,3:4,5:5}[n]}:{17+2*{1:3,3:4,5:5}[n]}]")
        if nocomp: continue
        A("s_nop 1")
        for e in range(8):
            A(f"v_mfma_f32_16x16x32_bf16 {vr(ACC+4*e)}, {vr(SA+4*n)}, {vr(F+4*e)}, {vr(ACC+4*e)}")
    A.c("---- wave finish")
    if stamps:
        A(f"s_memrealtime s[{sTs+4}:{sTs+5}]")
        A("s_waitcnt lgkmcnt(0)")
        if stamps == 1: rec_store(16, 12, DBG_OFF + 0xA0000, 6, RING, wait=False)
    if opt.get("notail"): A("s_branch L_fin")
    if opt.get("tailcut") == 1: A("s_waitcnt vmcnt(0)"); A("s_branch L_fin")
    GT = 252
    A(f"s_memrealtime s[{sTt}:{sTt+1}]")
    A(f"s_lshl_b32 s{sT1}, s{sW}, 11")
    A(f"v_lshlrev_b32 v14, 7, v{vLane}")
    A(f"v_add_u32 v14, s{sT1}, v14")
    A(f"v_mov_b32 v12, v{vLs}")
    A(f"v_mov_b32 v13, {L_GATE}")
    A("s_mov_b64 exec, 0xffff")
    for e in range(8):
        A(f"ds_write_b128 v14, {vr(ACC+4*e)} offset:{L_ACC+16*e}")
    A("s_mov_b64 exec, -1")
    A(f"v_permlane32_swap_b32 v{vLs}, v12")
    A("s_nop 1")
    A(f"v_add_f32 v{vLs}, v{vLs}, v12")
    A(f"v_mov_b32 v12, v{vLs}")
    A(f"s_lshl_b32 s{sT1}, s{sW}, 4")
    A(f"v_lshlrev_b32 v11, 3, v{vLane}")
    A(f"v_permlane16_swap_b32 v{vLs}, v12")
    A(f"v_add_u32 v11, s{sT1}, v11")
    A("s_nop 0")
    A(f"v_add_f32 v{vLs}, v{vLs}, v12")
    A("s_mov_b64 exec, 3")
    A(f"ds_write_b64 v11, v[{vM}:{vLs}] offset:{L_ML}")
    A("s_mov_b64 exec, -1")
    A(f"s_cmp_ge_u32 s{sW}, 4")
    A("s_cbranch_scc1 L_nowo2")
    A(f"v_mov_b32 v11, {L_FLAG}")
    A.lab("L_latespin")
    A("ds_read_b32 v12, v11 offset:4")
    A("s_waitcnt lgkmcnt(0)")
    A(f"v_readfirstlane_b32 s{sT1}, v12")
    A(f"s_cmp_lg_u32 s{sT1}, 0")
    A("s_cbranch_scc1 L_latego")
    A("s_sleep 4")
    A("s_branch L_latespin")
    A.lab("L_latego")
    wo_loads()
    A.lab("L_nowo2")
    A("s_waitcnt lgkmcnt(0)")
    A(f"s_mov_b32 s{sNon}, s{sTs}")
    A(f"s_xor_b32 s{sTt+1}, s{sTt}, s{sTC}")
    A("s_barrier")
    A(f"ds_read_b64 v[{GT}:{GT+1}], v13")
    tst(0)
    A(f"s_cmp_lt_u32 s{sW}, 4")
    A("s_cbranch_scc1 L_h2")
    A(f"s_cmp_gt_u32 s{sW}, 5")
    A("s_cbranch_scc1 L_fin")
    A.c("---- merge: waves 4,5")
    A(f"v_and_b32 v11, 7, v{vLane}")
    A(f"v_lshlrev_b32 v11, 4, v11")
    A(f"v_bfe_u32 v12, v{vLane}, 3, 1")
    A(f"v_lshlrev_b32 v12, 3, v12")
    A("v_add_u32 v11, v11, v12")
    A(f"ds_read_b64 v[14:15], v11 offset:{L_ML}")
    A(f"s_sub_u32 s{sT1}, s{sW}, 4")
    A(f"s_lshl_b32 s{sT1}, s{sT1}, 10")
    A(f"v_lshlrev_b32 v13, 4, v{vLane}")
    A(f"v_add_u32 v13, s{sT1}, v13")
    for w in range(8):
        A(f"ds_read_b128 {vr(RG+4*w)}, v13 offset:{L_ACC+2048*w}")
    A(f"s_lshl_b32 s{sT2}, s{sG}, 4")
    A(f"s_add_u32 s{sT2}, s{sT2}, s{sJ}")
    A(f"s_mul_i32 s{sT2}, s{sT2}, {H2_PSTRIDE}")
    A(f"s_add_u32 s{sT2}, s{sT2}, {H2_OFF}")
    A(f"s_lshr_b32 s{sT1}, s{sT1}, 2")
    A(f"s_add_u32 s{sT1}, s{sT1}, s{sT2}")
    A(f"s_mov_b32 s{sCons}, s{sT2}")
    A(f"v_lshlrev_b32 v13, 2, v{vLane}")
    A(f"s_mov_b32 s{sEx}, 0x55555555"); A(f"s_mov_b32 s{sEx+1}, 0x55555555")
    A("s_waitcnt lgkmcnt(8)")
    A("v_mov_b32 v11, v14")
    A("s_nop 1")
    for ctl in RED8:
        A(f"v_max_f32_dpp v11, v11, v11 {ctl} {DPPM}")
        A("s_nop 1")
    A("v_sub_f32 v12, v14, v11")
    A(f"v_mul_f32 v12, s{sC}, v12")
    A("v_exp_f32 v12, v12")
    A("s_nop 0")
    A("v_mul_f32 v15, v15, v12")
    for k in range(16):
        A(f"v_readlane_b32 s{16+k}, v12, {k}")
    for ctl in RED8:
        A(f"v_add_f32_dpp v15, v15, v15 {ctl} {DPPM}")
        A("s_nop 1")
    A(f"v_bfe_u32 v10, v{vLane}, 1, 1")
    A(f"v_mul_lo_u32 v10, v10, s{sTC}")
    A(f"v_xor_b32 v10, s{sTt}, v10")
    for i in range(4): A(f"v_mov_b32 v{TL+2*i+1}, v10")
    A("s_waitcnt lgkmcnt(0)")
    for i in range(4):
        A(f"v_mul_f32 v{TL+2*i}, s{16+8*(i&1)}, v{RG+i}")
    for w in range(1, 8):
        for i in range(4):
            A(f"v_fma_f32 v{TL+2*i}, v{RG+4*w+i}, s{16+8*(i&1)+w}, v{TL+2*i}")
    A("s_nop 1")
    for i in range(4):
        A(f"v_mov_b32_dpp v{TL+8+i}, v{TL+2*i} quad_perm:[1,1,3,3] {DPPM}")
    for i in range(4):
        A(f"v_cvt_pk_bf16_f32 v{TL+2*i}, v{TL+2*i}, v{TL+8+i}")
    A(f"s_mov_b64 exec, s[{sEx}:{sEx+1}]")
    for i in range(4):
        half, h = i >> 1, i & 1
        A(f"buffer_store_dwordx2 {vr(TL+2*i,2)}, v13, {sr(WS_)}, s{sT1} offen offset:{(h*256+128*half)*4} sc1")
    A("s_mov_b64 exec, -1")
    if stamps:
        A("s_memrealtime s[30:31]"); A("s_waitcnt lgkmcnt(0)")
    A(f"s_cmp_lg_u32 s{sW}, 4")
    A("s_cbranch_scc1 L_fin")
    A(f"v_readlane_b32 s16, v11, 0"); A(f"v_readlane_b32 s17, v11, 8")
    A(f"v_readlane_b32 s18, v15, 0"); A(f"v_readlane_b32 s19, v15, 8")
    A(f"v_and_b32 v13, 1, v{vLane}")
    A("v_cmp_eq_u32 vcc, 0, v13")
    A(f"v_mov_b32 v{TL+8}, s17"); A(f"v_mov_b32 v{TL+10}, s19")
    A(f"v_mov_b32 v12, s16"); A(f"v_mov_b32 v14, s18")
    A(f"v_mov_b32 v{TL+9}, s{sTt}")
    A(f"v_mov_b32 v{TL+11}, s{sTt+1}")
    A(f"v_cndmask_b32 v{TL+8}, v{TL+8}, v12, vcc")
    A(f"v_cndmask_b32 v{TL+10}, v{TL+10}, v14, vcc")
    A(f"v_lshlrev_b32 v13, 4, v{vLane}")
    A("s_mov_b64 exec, 0xf")
    A(f"buffer_store_dwordx4 {vr(TL+8)}, v13, {sr(WS_)}, s{sCons} offen offset:2048 sc1")
    A("s_branch L_fin")
    A.lab("L_h2")
    if opt.get("tailcut") == 2: A("s_waitcnt vmcnt(0)"); A("s_branch L_fin")
    A.c("---- H2 consume: wave 0 polls; waves 0..3 project, tau = w")
    vRd, vYr, vH3, vYwB = TL+4, TL+5, TL+6, TL+7
    A(f"v_lshrrev_b32 v11, 1, v{vGq}")
    A(f"v_lshlrev_b32 v11, 9, v11")
    A(f"v_lshlrev_b32 v12, 5, v{vR}")
    A(f"s_lshl_b32 s{sT1}, s{sW}, 10")
    A(f"s_add_u32 s{sT2}, s{sT1}, {L_Y}")
    A(f"v_add3_u32 v{vYwB}, v11, v12, s{sT2}")
    A(f"v_lshlrev_b32 v11, 4, v{vLane}")
    A(f"v_add_u32 v{vYr}, s{sT2}, v11")
    A(f"v_lshrrev_b32 v11, 5, v{vLane}")
    A(f"v_mul_u32_u24 v11, {112*16}, v11")
    A(f"v_and_b32 v12, 31, v{vLane}")
    A(f"v_lshlrev_b32 v12, 4, v12")
    A(f"v_add_u32 v{vH3}, v11, v12")
    A(f"v_lshrrev_b32 v11, 2, v{vLane}")
    A(f"v_mul_u32_u24 v11, {H3_PSTRIDE}, v11")
    A(f"v_and_b32 v12, 3, v{vLane}")
    A(f"v_lshlrev_b32 v12, 4, v12")
    A(f"v_add_u32 v{vRd}, v11, v12")
    A(f"s_mov_b32 s{sA0}, 0x0000ffff"); A(f"s_mov_b32 s{sA1}, 0x0000ffff")
    A(f"s_cmp_eq_u32 s{sW}, 3")
    A(f"s_cselect_b32 s{sEx}, 0xffff, -1")
    A(f"s_cselect_b32 s{sEx+1}, 0xffff, -1")
    A(f"s_cmp_lg_u32 s{sW}, 0")
    A("s_cbranch_scc1 L_h2wait")
    A(f"s_mul_i32 s{sT1}, s{sG}, {16*H2_PSTRIDE}")
    A(f"s_add_u32 s{sT1}, s{sT1}, {H2_OFF}")
    A(f"s_lshl_b32 s{sT2}, s{sB}, 4")
    A(f"s_add_u32 s{sT2}, s{sT2}, s{sT1}")
    A(f"s_lshl_b32 s{sT0}, s{sJ}, 7")
    A(f"s_add_u32 s{sT1}, s{sT1}, s{sT0}")
    A(f"v_mul_u32_u24 v11, {H2_PSTRIDE}, v{vR}")
    A(f"v_lshlrev_b32 v12, 5, v{vGq}")
    A("v_add_u32 v12, v11, v12")
    A(f"s_mov_b32 s{sSpin}, 0")
    def h2issue():
        for k in range(2):
            A(f"buffer_load_dwordx4 {vr(F+4*k)}, v12, {sr(WS_)}, s{sT1} offen offset:{16*k} sc1")
        A(f"buffer_load_dwordx4 {vr(F+8)}, v11, {sr(WS_)}, s{sT2} offen offset:2048 sc1")
    A("s_waitcnt vmcnt(0)")
    wo_perm()
    if stamps:
        A("s_memrealtime s[28:29]"); A("s_waitcnt lgkmcnt(0)")
    A.lab("L_h2poll")
    h2issue()
    A("s_waitcnt vmcnt(0)")
    tag_check(F, 3, 13, 14)
    A("s_cbranch_vccz L_h2got")
    if opt.get("sl2", 0): A(f"s_sleep {opt['sl2']}")
    A(f"s_add_u32 s{sSpin}, s{sSpin}, 1")
    A(f"s_cmp_lt_u32 s{sSpin}, {maxspin}")
    A("s_cbranch_scc1 L_h2poll")
    A.lab("L_h2got")
    tst(1)
    if stamps: A(f"s_mov_b32 s41, s{sSpin}")
    mreg, lreg = F+8, F+10
    O = F + 12
    A(f"v_mov_b32 v13, v{mreg}")
    for k in range(4):
        A(f"v_lshlrev_b32 v{O+2*k}, 16, v{F+2*k}")
        A(f"v_and_b32 v{O+2*k+1}, 0xffff0000, v{F+2*k}")
    for ctl in RED8:
        A(f"v_max_f32_dpp v13, v13, v13 {ctl} {DPPM}")
        A("s_nop 1")
    A(f"v_sub_f32 v13, v{mreg}, v13")
    A(f"v_mul_f32 v13, s{sC}, v13")
    A("v_exp_f32 v13, v13")
    A("s_nop 0")
    A(f"v_mul_f32 v14, v13, v{lreg}")
    for k in range(8):
        A(f"v_mul_f32 v{O+k}, v13, v{O+k}")
    for ctl in RED8:
        A(f"v_add_f32_dpp v14, v14, v14 {ctl} {DPPM}")
        for k in range(8):
            A(f"v_add_f32_dpp v{O+k}, v{O+k}, v{O+k} {ctl} {DPPM}")
    A(f"v_cmp_gt_u32 vcc, 8, v{vR}")
    A("v_rcp_f32 v14, v14")
    A("s_waitcnt lgkmcnt(0)")
    A(f"v_cndmask_b32 v15, v{GT+1}, v{GT}, vcc")
    A("v_mul_f32 v14, v14, v15")
    for k in range(8):
        A(f"v_mul_f32 v{O+k}, v14, v{O+k}")
    for i in range(4):
        A(f"v_cvt_pk_bf16_f32 v{AF+i}, v{O+2*i}, v{O+2*i+1}")
    A(f"v_lshlrev_b32 v11, 4, v{vLane}")
    A(f"ds_write_b128 v11, {vr(AF)} offset:{L_QF}")
    A("s_waitcnt lgkmcnt(0)")
    A("s_barrier")
    A("s_branch L_h2go")
    A.lab("L_h2wait")
    A("s_waitcnt vmcnt(0)")
    wo_perm()
    A(f"v_lshlrev_b32 v11, 4, v{vLane}")
    A("s_barrier")
    A(f"ds_read_b128 {vr(AF)}, v11 offset:{L_QF}")
    A("s_waitcnt lgkmcnt(0)")
    A.lab("L_h2go")
    for e in range(8):
        A(f"v_mfma_f32_16x16x32_bf16 {vr(ACC+4*e)}, {vr(AF)}, {vr(KA+4*e)}, 0")
    A(f"s_mul_i32 s{sT1}, s2, {H3_PSTRIDE}")
    A(f"s_lshl_b32 s{sT2}, s{sW}, 9")
    A(f"s_add_u32 s{sT1}, s{sT1}, s{sT2}")
    A(f"s_add_u32 s{sT1}, s{sT1}, {H3_OFF}")
    A(f"v_mov_b32 v{F+1}, s{sTt}"); A(f"v_mov_b32 v{F+3}, s{sTt+1}")
    A(f"s_mov_b64 exec, s[{sA0}:{sA1}]")
    A("s_nop 3")
    for e in range(0, 8, 2):
        A(f"ds_write2_b32 v{vYwB}, v{ACC+4*e}, v{ACC+4*(e+1)} offset0:{e} offset1:{e+1}")
    A("s_mov_b64 exec, -1")
    A("s_waitcnt lgkmcnt(0)")
    A(f"ds_read_b128 {vr(F+8)}, v{vYr}")
    A("s_waitcnt lgkmcnt(0)")
    A(f"v_cvt_pk_bf16_f32 v{F}, v{F+8}, v{F+9}")
    A(f"v_cvt_pk_bf16_f32 v{F+2}, v{F+10}, v{F+11}")
    A(f"s_mov_b64 exec, s[{sEx}:{sEx+1}]")
    A(f"buffer_store_dwordx4 {vr(F)}, v{vH3}, {sr(WS_)}, s{sT1} offen sc1")
    A("s_mov_b64 exec, -1")
    tst(2)
    if opt.get("tailcut") == 3: A("s_branch L_fin")
    A(f"s_cmp_ge_u32 s2, {NRED}")
    A("s_cbranch_scc1 L_fin")
    A(f"s_lshl_b32 s{sT1}, s2, 6")
    A(f"s_mul_i32 s{sT2}, s{sW}, {64*H3_PSTRIDE}")
    A(f"s_add_u32 s{sT1}, s{sT1}, s{sT2}")
    A(f"s_add_u32 s{sT1}, s{sT1}, {H3_OFF}")
    A(f"s_mov_b32 s{sSpin}, 0")
    A.lab("L_h3poll")
    A(f"s_mov_b32 s{sT2}, s{sT1}")
    for k in range(4):
        A(f"buffer_load_dwordx4 {vr(H+4*k)}, v{vRd}, {sr(WS_)}, s{sT2} offen sc1")
        if k < 3: A(f"s_add_u32 s{sT2}, s{sT2}, {16*H3_PSTRIDE}")
    A("s_waitcnt vmcnt(0)")
    tag_check(H, 4, 13, 14)
    A("s_cbranch_vccz L_h3got")
    if opt.get("sl3", 0): A(f"s_sleep {opt['sl3']}")
    A(f"s_add_u32 s{sSpin}, s{sSpin}, 1")
    A(f"s_cmp_lt_u32 s{sSpin}, {maxspin}")
    A("s_cbranch_scc1 L_h3poll")
    A.lab("L_h3got")
    tst(3)
    if stamps: A(f"s_mov_b32 s42, s{sSpin}")
    Y = H + 16
    for k in range(4):
        for half in range(2):
            d = H + 4*k + 2*half
            lo, hi = Y + 2*half, Y + 2*half + 1
            if k == 0:
                A(f"v_lshlrev_b32 v{lo}, 16, v{d}")
                A(f"v_and_b32 v{hi}, 0xffff0000, v{d}")
            else:
                A(f"v_lshlrev_b32 v13, 16, v{d}")
                A(f"v_and_b32 v14, 0xffff0000, v{d}")
                A(f"v_add_f32 v{lo}, v{lo}, v13")
                A(f"v_add_f32 v{hi}, v{hi}, v14")
    A("s_nop 1")
    allreduce_add([Y, Y+1, Y+2, Y+3], [Y+4, Y+5, Y+6, Y+7], ["row_ror:4", "row_ror:8"])
    A(f"s_lshl_b32 s{sT1}, s{sW}, 6")
    A(f"v_lshlrev_b32 v11, 4, v{vLane}")
    A(f"v_add_u32 v12, s{sT1}, v11")
    A("s_mov_b64 exec, 0xf")
    A(f"ds_write_b128 v12, {vr(Y)} offset:{L_Y2}")
    A("s_waitcnt lgkmcnt(0)")
    A("s_barrier")
    A(f"s_cmp_lg_u32 s{sW}, 0")
    A("s_cbranch_scc1 L_fin")
    for w in range(4):
        A(f"ds_read_b128 {vr(Y+8+4*w)}, v11 offset:{L_Y2+64*w}")
    A("s_waitcnt lgkmcnt(0)")
    for i in range(4):
        A(f"v_add_f32 v{Y+8+i}, v{Y+8+i}, v{Y+12+i}")
        A(f"v_add_f32 v{Y+16+i}, v{Y+16+i}, v{Y+20+i}")
    for i in range(4):
        A(f"v_add_f32 v{Y+8+i}, v{Y+8+i}, v{Y+16+i}")
    A(f"v_cvt_pk_bf16_f32 v{Y+8}, v{Y+8}, v{Y+9}")
    A(f"v_cvt_pk_bf16_f32 v{Y+9}, v{Y+10}, v{Y+11}")
    A(f"s_lshl_b32 s{sT1}, s2, 5")
    A(f"v_lshlrev_b32 v11, 3, v{vLane}")
    A(f"buffer_store_dwordx2 {vr(Y+8,2)}, v11, {sr(OUT_)}, s{sT1} offen")
    A.lab("L_fin")
    if stamps:
        A("s_mov_b64 exec, -1")
        A(f"s_memrealtime s[{sTs+6}:{sTs+7}]")
        A("s_waitcnt lgkmcnt(0)")
        rec_store(sTs, 8, DBG_OFF, 5, RING)
        rec_store(32, 8, DBG_OFF + 0x60000, 6, RING)
        A("s_mov_b32 s32, s41"); A("s_mov_b32 s33, 0"); A("s_mov_b32 s34, s42"); A("s_mov_b32 s35, 0")
        for k in range(4): A(f"s_mov_b32 s{36+k}, s{28+k}")
        rec_store(32, 8, DBG_OFF + 0x60000 + 32, 6, RING)
    A.lab("L_end")
    A("s_endpgm")

    out = [HEADER.rstrip("\n"),
           "; Override launch geometry by editing the next line (default: block=256,",
           "; grid=ceil(out_elems/256), lds=0). Harness parses it; keep it on one line.",
           f"; @launch grid=(256,1,1) block=(512,1,1) lds={LDS_BYTES}",
           '.amdgcn_target "amdgcn-amd-amdhsa--gfx950"', ".text", f".globl {KNAME}", ".p2align 8",
           f".type {KNAME},@function", f"{KNAME}:"]
    body = [l for l in A.L if l is not None]
    if any("CPF_DELTA" in l for l in body):
        k = next(i for i, l in enumerate(body) if "s_getpc_b64" in l)
        body.insert(k + 1, "L_after_getpc:")
        body = [l.replace("CPF_DELTA", f"(L_after_getpc-{KNAME})") for l in body]
    out += body
    out += ['.section .rodata,"a"', ".p2align 6", f".amdhsa_kernel {KNAME}",
            "  .amdhsa_next_free_vgpr 256", "  .amdhsa_next_free_sgpr 102", "  .amdhsa_accum_offset 256",
            "  .amdhsa_group_segment_fixed_size 0", "  .amdhsa_kernarg_size 112", "  .amdhsa_user_sgpr_count 2",
            "  .amdhsa_user_sgpr_kernarg_segment_ptr 1", "  .amdhsa_system_sgpr_workgroup_id_x 1", ".end_amdhsa_kernel"]
    return "\n".join(out) + "\n"

if __name__ == "__main__":
    ap = argparse.ArgumentParser()
    ap.add_argument("-o", default="gated_mix__gqa_block_cached__gqa_block_cached__decode.s")
    ap.add_argument("--stamps", type=int, nargs="?", const=1, default=0)
    ap.add_argument("--nt", default="nt")
    ap.add_argument("--opt", default="")
    a = ap.parse_args()
    open(a.o, "w").write(gen(stamps=a.stamps, nt=a.nt, opt=eval("dict(%s)" % a.opt)))
    print("wrote", a.o)
```

```python
import sys, argparse, struct

KNAME = "gated_mix__gqa_block_cached__gqa_block_cached__decode_kernel"
HEADER = open("gated_mix__gqa_block_cached__gqa_block_cached__decode.s.ref").read().split("; Override launch")[0]

QBUF_OFF = 0x0
CNT_OFF  = 0x14000
H2_OFF   = 0x20000
H2_PSTRIDE = 2176
H3_OFF   = 0x200000
H3_PSTRIDE = 3584
DBG_OFF  = 0x400000
WS_BYTES = 0x800000
NRED = 56

L_QP  = 0
L_QF  = 4096
L_ML  = L_QF + 1024
L_GATE = L_ML + 128
L_FLAG = L_GATE + 16
L_Y2  = L_GATE + 64
L_ACC = 6144
L_Y   = L_ACC + 16384
LDS_BYTES = 96 * 1024

C_SCALE = 1.4426950408889634 / 16.0
def f2u(f): return struct.unpack("<I", struct.pack("<f", f))[0]

class G:
    def __init__(s): s.L = []
    def __call__(s, t): s.L.append("    " + t)
    def lab(s, t): s.L.append(t + ":")
    def c(s, t): s.L.append("    ; " + t)

def vr(a, n=4): return f"v[{a}:{a+n-1}]"
def sr(a, n=4): return f"s[{a}:{a+n-1}]"
DPPM = "row_mask:0xf bank_mask:0xf"
RED8 = ("quad_perm:[1,0,3,2]", "quad_perm:[2,3,0,1]", "row_half_mirror")

def gen(stamps=False, nt="nt", maxspin=400000, opt=None):
    opt = opt or {}
    NS = opt.get("ns", 32)
    A = G()
    sG, sJ, sB, sSP, sBR, sKVH, sW = 3, 4, 5, 6, 7, 8, 9
    sO, sO2 = 10, 11
    sBase = 12
    sT0, sT1, sT2 = 14, 15, 88
    K_, V_, WQ_, WO_, WS_, X_, GW_, OUT_, DB_ = 44, 48, 52, 56, 60, 64, 68, 72, 76
    sSelLo, sSelHi, sC = 80, 81, 82
    sM2 = 84
    sA0, sA1 = 86, 87
    sSpin = 89
    sEx = 90
    sTs = 92
    sNon = 101
    sCons = 13
    sTt = 10
    sTC = 83
    sStep = 100
    sCnt = 13
    sCB = 86
    sXp = 87
    sB7, sB8 = 40, 41
    vLane, vR, vGq, vKoff, vVoff, vM, vLs, vMsk = 2, 3, 4, 5, 6, 8, 9, 10
    RING = 16
    F = 144
    D = F
    ACC = 176
    QB = 208
    SA = 216
    TT = ACC + 8
    TL = SA
    PX = ACC
    AF = QB
    KA, H, WR, RG = RING, RING + 32, RING + 64, RING

    def tst(k):
        if stamps:
            A(f"s_memrealtime s[{32+2*k}:{33+2*k}]"); A("s_waitcnt lgkmcnt(0)")
    def xst(k):
        if stamps:
            A(f"s_memrealtime s[{16+2*k}:{17+2*k}]"); A("s_waitcnt lgkmcnt(0)")
    def rec_store(first_sgpr, n, off, lg, tmp, wait=True):
        A("s_mov_b64 exec, 1")
        A(f"s_lshl_b32 s{sT1}, s2, 3"); A(f"s_add_u32 s{sT1}, s{sT1}, s{sW}")
        A(f"s_lshl_b32 s{sT1}, s{sT1}, {lg}"); A(f"s_add_u32 s{sT1}, s{sT1}, {off}")
        for k in range(n): A(f"v_mov_b32 v{tmp+k}, s{first_sgpr+k}")
        for k in range(0, n, 4):
            A(f"buffer_store_dwordx4 v[{tmp+k}:{tmp+k+3}], off, {sr(WS_)}, s{sT1} offset:{4*k}")
        if wait: A("s_waitcnt vmcnt(0)")
        A("s_mov_b64 exec, -1")

    A.c("entry")
    A("s_cmp_ge_u32 s2, 256")
    A("s_cbranch_scc1 L_end")
    A(f"s_memrealtime s[{sTs}:{sTs+1}]")
    A("s_load_dwordx16 s[16:31], s[0:1], 0")
    A("s_load_dwordx8 s[32:39], s[0:1], 64")
    A("s_load_dwordx4 s[40:43], s[0:1], 96")
    A("v_lshrrev_b32 v1, 6, v0")
    A(f"v_and_b32 v{vLane}, 63, v0")
    A(f"v_readfirstlane_b32 s{sW}, v1")
    A(f"s_bfe_u32 s{sT1}, s2, 0x20006")
    A(f"s_lshl_b32 s{sG}, s{sT1}, 2")
    A(f"s_bfe_u32 s{sT1}, s2, 0x20001")
    A(f"s_add_u32 s{sG}, s{sG}, s{sT1}")
    A(f"s_bfe_u32 s{sB}, s2, 0x10005")
    A(f"s_bfe_u32 s{sT1}, s2, 0x20003")
    A(f"s_lshl_b32 s{sSP}, s{sT1}, 1")
    A(f"s_and_b32 s{sT1}, s2, 1")
    A(f"s_add_u32 s{sSP}, s{sSP}, s{sT1}")
    A(f"s_lshr_b32 s{sBR}, s{sG}, 3")
    A(f"s_and_b32 s{sKVH}, s{sG}, 7")
    A(f"s_lshl_b32 s{sJ}, s{sB}, 3")
    A(f"s_add_u32 s{sJ}, s{sJ}, s{sSP}")
    A(f"s_and_b32 s{sCB}, s2, 1")
    A(f"s_lshl_b32 s{sCB}, s{sCB}, 3")
    A(f"s_lshl_b32 s{sT1}, s{sB}, 2")
    A(f"s_add_u32 s{sCB}, s{sCB}, s{sT1}")
    A(f"s_lshr_b32 s{sT1}, s{sSP}, 1")
    A(f"s_add_u32 s{sCB}, s{sCB}, s{sT1}")
    A(f"v_and_b32 v{vR}, 15, v{vLane}")
    A(f"v_lshrrev_b32 v{vGq}, 4, v{vLane}")
    A(f"v_lshrrev_b32 v11, 2, v{vR}")
    A(f"v_lshlrev_b32 v11, 9, v11")
    A(f"v_and_b32 v12, 3, v{vR}")
    A(f"v_lshlrev_b32 v12, 4, v12")
    A(f"v_lshlrev_b32 v13, 6, v{vGq}")
    A(f"v_add3_u32 v{vKoff}, v11, v12, v13")
    A(f"v_lshlrev_b32 v11, 9, v{vGq}")
    A(f"v_lshlrev_b32 v12, 4, v{vR}")
    A(f"v_add_u32 v{vVoff}, v11, v12")
    A(f"s_mov_b32 s{sSelLo}, 0x05040100")
    A(f"s_mov_b32 s{sSelHi}, 0x07060302")
    A(f"s_mov_b32 s{sC}, {f2u(C_SCALE):#x}")
    A(f"s_mov_b32 s{sTC}, 0x9E3779B9")
    A(f"s_mov_b32 s{sM2}, 0x00030003")
    A(f"s_mov_b32 s{sM2+1}, 0x00030003")
    A(f"v_cndmask_b32 v{vMsk}, 0, -1, s[{sM2}:{sM2+1}]")
    A(f"s_lshr_b32 s{sBase}, s{sSP}, 1")
    A(f"s_lshl_b32 s{sBase}, s{sBase}, 7")
    A(f"s_add_u32 s{sBase}, s{sBase}, s{sW}")
    A(f"s_and_b32 s{sT1}, s{sSP}, 1")
    A(f"s_mul_i32 s{sT1}, s{sT1}, 96")
    A(f"s_add_u32 s{sBase}, s{sBase}, s{sT1}")
    A(f"s_getreg_b32 s{sXp}, hwreg(HW_REG_XCC_ID, 0, 1)")
    A(f"s_lshl_b32 s{sT1}, s{sB}, 3")
    A(f"s_add_u32 s{sT1}, s{sT1}, s{sKVH}")
    A(f"s_lshl_b32 s{sT1}, s{sT1}, 22")
    A("s_waitcnt lgkmcnt(0)")
    A(f"s_cmp_eq_u32 s{sBR}, 0")
    for (srd, a, b_) in ((WQ_, 22, 32), (K_, 18, 28), (V_, 20, 30), (WO_, 24, 34)):
        A(f"s_cselect_b32 s{srd}, s{a}, s{b_}")
        A(f"s_cselect_b32 s{srd+1}, s{a+1}, s{b_+1}")
    for srd in (K_, V_):
        A(f"s_add_u32 s{srd}, s{srd}, s{sT1}")
        A(f"s_addc_u32 s{srd+1}, s{srd+1}, 0")
        A(f"s_mov_b32 s{srd+2}, 0x400000")
        A(f"s_mov_b32 s{srd+3}, 0x20000")
    for srd in (WQ_, WO_):
        A(f"s_mov_b32 s{srd+2}, {448*4096*2}")
        A(f"s_mov_b32 s{srd+3}, 0x20000")
    for (srd, a, n) in ((WS_, 42, WS_BYTES), (X_, 16, 1792), (GW_, 36, 896), (OUT_, 38, 1792), (DB_, 40, 256)):
        A(f"s_mov_b32 s{srd}, s{a}")
        A(f"s_mov_b32 s{srd+1}, s{a+1}")
        A(f"s_mov_b32 s{srd+2}, {n}")
        A(f"s_mov_b32 s{srd+3}, 0x20000")

    NA = 9
    NLD = 16 * NA
    def tile_off(n):
        A(f"s_add_u32 s{sO}, s{sBase if n < 4 else sStep}, {8*n}")
        A(f"s_lshl_b32 s{sO}, s{sO}, 13")
        if n >= 7:
            A(f"s_add_u32 s{sO2}, s{sW}, {8*n}")
            A(f"s_cmp_lt_u32 s{sO2}, s{sCnt}")
            A(f"s_cselect_b32 s{sO}, s{sO}, 0x400000")
        A(f"s_add_u32 s{sO2}, s{sO}, 4096")
    def slot(i): return RING + 4 * (i % NS)
    def issue(i):
        if i >= NLD: return
        j = i & 7
        if j == 0: tile_off((i >> 3) % NA)
        if i < 8 * NA:
            g_, hf = j >> 1, j & 1
            so = sO if g_ < 2 else sO2
            A(f"buffer_load_dwordx4 {vr(slot(i))}, v{vKoff}, {sr(K_)}, s{so} offen offset:{(g_&1)*2048+hf*256} {nt}")
        else:
            hf, jp = j >> 2, j & 3
            so = sO if jp < 2 else sO2
            A(f"buffer_load_dwordx4 {vr(slot(i))}, v{vVoff}, {sr(V_)}, s{so} offen offset:{(jp&1)*2048+hf*256} {nt}")
    def prefetch(lo, hi):
        for i in range(lo, hi): issue(i)
    def wo_loads():
        A(f"s_lshl_b32 s{sT1}, s{sKVH}, 9")
        A(f"s_lshl_b32 s{sT2}, s{sJ}, 5")
        A(f"s_add_u32 s{sT1}, s{sT1}, s{sT2}")
        A(f"s_mul_i32 s{sT1}, s{sT1}, 896")
        A(f"s_lshl_b32 s{sT2}, s{sW}, 8")
        A(f"s_add_u32 s{sT1}, s{sT1}, s{sT2}")
        A(f"v_mul_u32_u24 v11, {8*896}, v{vGq}")
        A(f"v_lshlrev_b32 v12, 4, v{vR}")
        A(f"v_add_u32 v15, v11, v12")
        for jj in range(8):
            A(f"buffer_load_dwordx4 {vr(WR+4*jj)}, v15, {sr(WO_)}, s{sT1} offen {nt}")
            if jj < 7: A(f"s_add_u32 s{sT1}, s{sT1}, 896")
    def wo_perm():
        for i in range(4):
            for d in range(4):
                A(f"v_perm_b32 v{KA+4*(2*d)+i}, v{WR+4*(2*i+1)+d}, v{WR+4*(2*i)+d}, s{sSelLo}")
                A(f"v_perm_b32 v{KA+4*(2*d+1)+i}, v{WR+4*(2*i+1)+d}, v{WR+4*(2*i)+d}, s{sSelHi}")
    def allreduce_add(regs, tmp, ctls):
        for ctl in ctls:
            for r_ in regs:
                A(f"v_add_f32_dpp v{r_}, v{r_}, v{r_} {ctl} {DPPM}")
            A("s_nop 1")
        for sw in ("v_permlane16_swap_b32", "v_permlane32_swap_b32"):
            for r_, t_ in zip(regs, tmp): A(f"v_mov_b32 v{t_}, v{r_}")
            A("s_nop 1")
            for r_, t_ in zip(regs, tmp): A(f"{sw} v{r_}, v{t_}")
            A("s_nop 1")
            for r_, t_ in zip(regs, tmp): A(f"v_add_f32 v{r_}, v{r_}, v{t_}")
            A("s_nop 1")

    def tag_check(r, npairs, acc, tmp):
        for k in range(npairs):
            ta, tb = r + 4*k + 1, r + 4*k + 3
            A(f"v_xor_b32 v{tmp}, v{ta}, v{tb}")
            A(f"v_xor_b32 v{tmp}, s{sTC}, v{tmp}")
            A(f"v_subrev_u32 v{ta}, s{sNon}, v{ta}")
            A(f"v_lshrrev_b32 v{ta}, 24, v{ta}")
            if k == 0: A(f"v_or_b32 v{acc}, v{tmp}, v{ta}")
            else: A(f"v_or3_b32 v{acc}, v{acc}, v{tmp}, v{ta}")
        A(f"v_cmp_ne_u32 vcc, 0, v{acc}")
    E1 = opt.get("e1", 16)
    if opt.get("cpf"):
        A(f"s_cmp_lg_u32 s{sW}, {opt.get('cpfw', 7)}")
        A("s_cbranch_scc1 L_nocpf")
        A("s_getpc_b64 s[40:41]")
        A("L_pc0:".replace(":", "") and "s_nop 0")
        A(f"s_sub_u32 s40, s40, CPF_DELTA")
        A("s_subb_u32 s41, s41, 0")
        A(f"v_lshlrev_b32 v11, 4, v{vLane}")
        for k in range(opt["cpf"]):
            A(f"global_load_dwordx4 v[{ACC+4*(k%8)}:{ACC+4*(k%8)+3}], v11, s[40:41]")
            A("v_add_u32 v11, 1024, v11")
        A("s_waitcnt vmcnt(0)") if opt.get("cpfwait") else None
        A.lab("L_nocpf")
    if opt.get("pure"):
        A(f"s_mov_b32 s{sCnt}, 64")
        prefetch(0, NS)
        A("s_branch L_main")
    A(f"s_cmp_eq_u32 s{sW}, 0")
    A("s_cbranch_scc1 L_helper")
    A(f"s_cmp_lt_u32 s{sW}, %d" % (1 if opt.get("nowq") else 5))
    A("s_cbranch_scc1 L_qproj")
    A("s_barrier")
    prefetch(0, E1)
    A("s_barrier")
    if opt.get("stage"): A("s_barrier")
    prefetch(E1, NS)
    A("s_branch L_qwait")
    A.lab("L_qproj")
    A.c("---- waves 1..4: q-proj partial (128 rows each)")
    A(f"s_sub_u32 s{sT0}, s{sW}, 1")
    A(f"v_lshrrev_b32 v11, 2, v{vLane}")
    A(f"v_and_b32 v12, 3, v{vLane}")
    A(f"s_lshl_b32 s{sT1}, s{sT0}, 7")
    A(f"v_lshlrev_b32 v11, 3, v11")
    A(f"v_add_u32 v11, s{sT1}, v11")
    A(f"v_lshlrev_b32 v13, 1, v11")
    A(f"v_lshlrev_b32 v11, 13, v11")
    A(f"v_lshlrev_b32 v12, 4, v12")
    A(f"v_add_u32 v14, v11, v12")
    A(f"s_lshl_b32 s{sT1}, s{sKVH}, 10")
    A(f"s_lshl_b32 s{sT2}, s{sCB}, 6")
    A(f"s_add_u32 s{sT1}, s{sT1}, s{sT2}")
    QW = RING
    wqnt = nt if opt.get("wqnt", 1) else opt.get("wqpol", "")
    for jj in range(8):
        A(f"buffer_load_dwordx4 {vr(QW+4*jj)}, v14, {sr(WQ_)}, s{sT1} offen {wqnt}")
        if jj < 7: A(f"s_add_u32 s{sT1}, s{sT1}, 8192")
    A(f"buffer_load_dwordx4 {vr(PX)}, v13, {sr(X_)}, 0 offen")
    A(f"buffer_load_dwordx4 {vr(PX+4)}, v13, {sr(X_)}, 0 offen offset:896")
    A("s_barrier")
    QA = F
    for k in range(16): A(f"v_mov_b32 v{QA+k}, 0")
    A("s_waitcnt vmcnt(0)")
    xst(0)
    for a in range(4):
        for d in range(4):
            A(f"v_perm_b32 v{TT+2*d}, v{QW+4*(2*a+1)+d}, v{QW+4*(2*a)+d}, s{sSelLo}")
            A(f"v_perm_b32 v{TT+2*d+1}, v{QW+4*(2*a+1)+d}, v{QW+4*(2*a)+d}, s{sSelHi}")
        for b_ in range(2):
            for cc in range(8):
                A(f"v_dot2_f32_bf16 v{QA+8*b_+cc}, v{TT+cc}, v{PX+4*b_+a}, v{QA+8*b_+cc}")
    A("s_nop 3")
    for ctl in ("row_ror:4", "row_ror:8"):
        for k in range(16):
            A(f"v_add_f32_dpp v{QA+k}, v{QA+k}, v{QA+k} {ctl} {DPPM}")
    A("s_nop 1")
    for k in range(0, 16, 2):
        A(f"v_permlane16_swap_b32 v{QA+k}, v{QA+k+1}")
    A("s_nop 1")
    for k in range(0, 16, 2):
        A(f"v_add_f32 v{QA+k}, v{QA+k}, v{QA+k+1}")
    A("s_nop 1")
    for k in range(0, 16, 4):
        A(f"v_permlane32_swap_b32 v{QA+k}, v{QA+k+2}")
    A("s_nop 1")
    for k in range(0, 16, 4):
        A(f"v_add_f32 v{QA+k}, v{QA+k}, v{QA+k+2}")
    A(f"s_lshl_b32 s{sT2}, s{sT0}, 10")
    A(f"v_lshlrev_b32 v11, 2, v{vLane}")
    A(f"v_add_u32 v11, s{sT2}, v11")
    for k in range(4):
        A(f"ds_write_b32 v11, v{QA+4*k} offset:{L_QP+256*k}")
    A("s_waitcnt lgkmcnt(0)")
    xst(1)
    A("s_barrier")
    xst(2)
    if opt.get("stage"): A("s_barrier")
    prefetch(0, NS)
    A.lab("L_qwait")
    xst(3)
    A(f"v_mov_b32 v11, {L_FLAG}")
    A.lab("L_qspin")
    A("ds_read_b32 v12, v11")
    A("s_waitcnt lgkmcnt(0)")
    A(f"v_readfirstlane_b32 s{sCnt}, v12")
    A(f"s_cmp_lg_u32 s{sCnt}, 0")
    A("s_cbranch_scc1 L_main")
    A("s_sleep 1")
    A("s_branch L_qspin")

    A.lab("L_helper")
    A.c("---- wave 0: nonce, gate, q reduce/publish/poll")
    PW = F + 16
    vGN = TL + 16
    A(f"v_lshlrev_b32 v11, 4, v{vLane}")
    A(f"buffer_load_dwordx4 {vr(PX)}, v11, {sr(X_)}, 0 offen")
    A(f"buffer_load_dwordx4 {vr(PX+4)}, v11, {sr(X_)}, 0 offen offset:896")
    A(f"buffer_load_dwordx4 {vr(PW)}, v11, {sr(GW_)}, 0 offen")
    A(f"v_mov_b32 v12, {L_FLAG}")
    A("v_mov_b32 v13, %d" % (64 if opt.get("noq") else 0))
    A("ds_write_b32 v12, v13")
    A("v_mov_b32 v13, 0")
    A("ds_write_b32 v12, v13 offset:4")
    A("s_waitcnt lgkmcnt(0)")
    A("s_barrier")
    A("s_waitcnt vmcnt(0)")
    xst(0)
    A("v_mov_b32 v12, 0"); A("v_mov_b32 v13, 0")
    for d in range(4):
        A(f"v_dot2_f32_bf16 v12, v{PX+d}, v{PW+d}, v12")
        A(f"v_dot2_f32_bf16 v13, v{PX+4+d}, v{PW+d}, v13")
    A("s_nop 3")
    allreduce_add([12, 13], [14, 15], list(RED8) + ["row_mirror"])
    A(f"s_mov_b32 s{sT1}, {f2u(-1.4426950408889634):#x}")
    A(f"s_mov_b32 s{sT2}, {f2u(1.4426950408889634):#x}")
    A(f"s_cmp_eq_u32 s{sBR}, 0")
    A(f"s_cselect_b32 s{sT1}, s{sT1}, s{sT2}")
    A(f"v_mul_f32 v12, s{sT1}, v12"); A(f"v_mul_f32 v13, s{sT1}, v13")
    A("v_exp_f32 v12, v12"); A("v_exp_f32 v13, v13")
    A("s_nop 0")
    A("v_add_f32 v12, 1.0, v12"); A("v_add_f32 v13, 1.0, v13")
    A("v_rcp_f32 v12, v12"); A("v_rcp_f32 v13, v13")
    A(f"v_mov_b32 v11, {L_GATE}")
    A("ds_write_b64 v11, v[12:13]")
    A(f"v_lshrrev_b32 v11, 5, v{vLane}")
    A(f"v_lshlrev_b32 v11, 9, v11")
    A(f"v_bfe_u32 v12, v{vLane}, 2, 1")
    A(f"v_lshlrev_b32 v12, 8, v12")
    A(f"v_and_b32 v13, 3, v{vLane}")
    A(f"v_lshlrev_b32 v13, 6, v13")
    A(f"v_add3_u32 v11, v11, v12, v13")
    A(f"v_bfe_u32 v12, v{vLane}, 3, 2")
    A(f"v_lshlrev_b32 v12, 2, v12")
    A(f"v_add_u32 v11, v11, v12")
    A(f"v_lshrrev_b32 v14, 5, v{vLane}")
    A(f"v_lshlrev_b32 v14, 11, v14")
    A(f"v_and_b32 v12, 31, v{vLane}")
    A(f"v_lshlrev_b32 v12, 2, v12")
    A(f"v_add_u32 v14, v14, v12")
    A(f"v_lshlrev_b32 v15, 5, v{vLane}")
    A(f"s_lshl_b32 s{sT1}, s{sG}, 12")
    A(f"s_lshl_b32 s{sT2}, s{sCB}, 7")
    A(f"s_add_u32 s{sT1}, s{sT1}, s{sT2}")
    A(f"s_lshl_b32 s{sT0}, s{sG}, 12")
    A(f"s_lshl_b32 s{sT2}, s{sB}, 11")
    A(f"s_add_u32 s{sT0}, s{sT0}, s{sT2}")
    A(f"s_mov_b32 s{sEx}, 0x55555555"); A(f"s_mov_b32 s{sEx+1}, 0x55555555")
    A(f"v_bfe_u32 v12, v{vLane}, 1, 1")
    A(f"v_mul_lo_u32 v12, v12, s{sTC}")
    A(f"s_and_b32 s{sT2}, s{sTs}, -2")
    A(f"s_or_b32 s{sT2}, s{sT2}, s{sXp}")
    A(f"v_xor_b32 v{TL+5}, s{sT2}, v12")
    A(f"s_sub_u32 s{sNon}, s{sTs}, 3000")
    A("s_waitcnt lgkmcnt(0)")
    xst(1)
    A("s_barrier")
    xst(2)
    for k in range(4):
        A(f"ds_read_b32 v{TL+k}, v11 offset:{L_QP+1024*k}")
    A("s_waitcnt lgkmcnt(0)")
    A(f"v_add_f32 v{TL}, v{TL}, v{TL+1}")
    A(f"v_add_f32 v{TL+2}, v{TL+2}, v{TL+3}")
    A(f"v_add_f32 v{TL}, v{TL}, v{TL+2}")
    A("s_nop 1")
    A(f"v_mov_b32_dpp v{TL+1}, v{TL} quad_perm:[1,1,3,3] {DPPM}")
    A("s_nop 0")
    A(f"v_cvt_pk_bf16_f32 v{TL+4}, v{TL}, v{TL+1}")
    A(f"s_mov_b64 exec, s[{sEx}:{sEx+1}]")
    A(f"buffer_store_dwordx2 {vr(TL+4,2)}, v14, {sr(WS_)}, s{sT1} offen offset:{QBUF_OFF} sc1")
    A("s_mov_b64 exec, -1")
    xst(3)
    def qpoll(r):
        A(f"buffer_load_dwordx4 {vr(r)}, v15, {sr(WS_)}, s{sT0} offen offset:{QBUF_OFF} sc1")
        A(f"buffer_load_dwordx4 {vr(r+4)}, v15, {sr(WS_)}, s{sT0} offen offset:{QBUF_OFF+16} sc1")
    def qcheck(r, lab):
        tag_check(r, 2, 11, 12)
        A(f"s_cbranch_vccz {lab}")
    PB, PC = F, F + 8
    if opt.get("noq"): A("s_branch L_qgot")
    q1, q2 = opt.get("q1", 8), opt.get("q2", 16)
    if q1: A(f"s_sleep {q1}")
    qpoll(QB)
    if opt.get("stage") == 1: A("s_barrier")
    A(f"s_sleep {q2}")
    qpoll(PB)
    if opt.get("stage") == 2: A("s_barrier")
    A(f"s_sleep {q2}")
    qpoll(PC)
    A("s_waitcnt vmcnt(4)"); qcheck(QB, "L_qgot")
    A("s_waitcnt vmcnt(2)"); qcheck(PB, "L_qgotB")
    A("s_waitcnt vmcnt(0)"); qcheck(PC, "L_qgotC")
    A(f"s_mov_b32 s{sSpin}, 0")
    A.lab("L_qpoll")
    qpoll(QB)
    A("s_waitcnt vmcnt(0)"); qcheck(QB, "L_qgot")
    A(f"s_add_u32 s{sSpin}, s{sSpin}, 1")
    A(f"s_cmp_lt_u32 s{sSpin}, {maxspin}")
    A("s_cbranch_scc1 L_qpoll")
    A("s_branch L_qgot")
    A.lab("L_qgotB")
    for k in range(8): A(f"v_mov_b32 v{QB+k}, v{PB+k}")
    A("s_branch L_qgot")
    A.lab("L_qgotC")
    for k in range(8): A(f"v_mov_b32 v{QB+k}, v{PC+k}")
    A.lab("L_qgot")
    xst(4)
    DLT = opt.get("delta", 4)
    A(f"s_xor_b32 s{sT1}, s{sCB}, 8")
    A(f"s_lshl_b32 s{sT1}, s{sT1}, 2")
    A("s_nop 3")
    A(f"v_readlane_b32 s{sT2}, v{QB+3}, s{sT1}")
    A(f"s_xor_b32 s{sT2}, s{sT2}, s{sTC}")
    A(f"s_and_b32 s{sT2}, s{sT2}, 1")
    A(f"s_sub_u32 s{sT2}, s{sT2}, s{sXp}")
    A(f"s_mul_i32 s{sT2}, s{sT2}, {DLT}")
    A(f"s_add_u32 s{sCnt}, s{sT2}, 64")
    if opt.get("noq"): A(f"s_mov_b32 s{sCnt}, 64")
    A(f"v_mov_b32 v{QB+1}, v{QB+2}")
    A(f"v_mov_b32 v{QB+2}, v{QB+4}")
    A(f"v_mov_b32 v{QB+3}, v{QB+6}")
    A(f"v_lshlrev_b32 v11, 4, v{vLane}")
    A(f"ds_write_b128 v11, {vr(QB)} offset:{L_QF}")
    A(f"v_mov_b32 v11, {L_GATE}")
    A(f"s_add_u32 s{sCnt}, s{sT1}, 0") if False else None
    A(f"v_mov_b32 v13, s{sCnt}")
    A("s_waitcnt lgkmcnt(0)")
    A(f"ds_write_b32 v11, v13 offset:{L_FLAG-L_GATE}")
    A("s_waitcnt vmcnt(0)")
    prefetch(0, NS)
    xst(5)

    A.lab("L_main")
    nst = 0
    if stamps == 1:
        rec_store(16, 12, DBG_OFF + 0x20000, 6, TL, wait=False); nst = 3
    A(f"v_and_b32 v11, 1, v{vR}")
    A(f"v_lshlrev_b32 v11, 9, v11")
    A(f"v_bfe_u32 v12, v{vR}, 1, 2")
    A(f"v_lshlrev_b32 v12, 4, v12")
    A(f"v_lshlrev_b32 v13, 6, v{vGq}")
    A(f"v_add3_u32 v11, v11, v12, v13")
    A(f"ds_read_b128 {vr(QB)}, v11 offset:{L_QF}")
    A(f"ds_read_b128 {vr(QB+4)}, v11 offset:{L_QF+256}")
    A(f"s_and_b32 s{sT1}, s{sSP}, 1")
    A(f"s_mul_i32 s{sT1}, s{sT1}, s{sCnt}")
    A(f"s_sub_u32 s{sStep}, s{sBase}, s{sT1}")
    for n_, sb in ((7, sB7), (8, sB8)):
        A(f"s_add_u32 s{sT1}, s{sW}, {8*n_}")
        A(f"s_cmp_lt_u32 s{sT1}, s{sCnt}")
        A(f"s_cselect_b32 s{sb}, 0, 0xff7fffff")
    A("s_waitcnt lgkmcnt(0)")
    if stamps:
        A(f"s_memrealtime s[{sTs+2}:{sTs+3}]")
    nocomp = opt.get("nocomp")
    log = list(range(NS)) + ["x"] * nst
    def wait_for(i):
        k = log.index(i)
        A(f"s_waitcnt vmcnt({min(63, len(log) - 1 - k)})")
    nxt = NS
    def issue_next():
        nonlocal nxt
        if nxt < NLD:
            issue(nxt); log.append(nxt); nxt += 1
    for n in range(NA):
        for j in range(8):
            i = 8 * n + j
            g_, hf = j >> 1, j & 1
            wait_for(i)
            c_ = "0" if hf == 0 else vr(D+4*g_)
            if not nocomp:
                A(f"v_mfma_f32_16x16x32_bf16 {vr(D+4*g_)}, {vr(slot(i))}, {vr(QB+4*hf)}, {c_}")
            issue_next()
        if stamps and n in (1, 3, 7): A(f"s_memrealtime s[{16+2*{1:0,3:1,7:2}[n]}:{17+2*{1:0,3:1,7:2}[n]}]")
        if nocomp: continue
        Sn = SA + 4 * n
        for g_ in range(3):
            A(f"v_add_f32_dpp v{TT+2*g_}, v{D+4*g_+1}, v{D+4*g_+0} row_shl:2 {DPPM} bound_ctrl:0")
            A(f"v_add_f32_dpp v{TT+2*g_+1}, v{D+4*g_+3}, v{D+4*g_+2} row_shl:2 {DPPM} bound_ctrl:0")
        A("s_nop 3")
        A(f"v_add_f32_dpp v{TT+6}, v{D+13}, v{D+12} row_shl:2 {DPPM} bound_ctrl:0")
        A(f"v_add_f32_dpp v{TT+7}, v{D+15}, v{D+14} row_shl:2 {DPPM} bound_ctrl:0")
        for g_ in range(3):
            A(f"v_add_f32_dpp v{Sn+g_}, v{TT+2*g_+1}, v{TT+2*g_} row_shl:4 {DPPM} bound_ctrl:0")
        A(f"v_add_f32_dpp v{Sn+3}, v{TT+7}, v{TT+6} row_shl:4 {DPPM} bound_ctrl:0")
        if n >= 7:
            for g_ in range(4):
                A(f"v_add_f32 v{Sn+g_}, s{sB7 if n == 7 else sB8}, v{Sn+g_}")
    for k in range(32): A(f"v_mov_b32 v{ACC+k}, 0")
    if not nocomp:
        nS = 4 * NA
        A(f"v_max_f32 v11, v{SA}, v{SA+1}")
        A(f"v_max_f32 v12, v{SA+2}, v{SA+3}")
        for k in range(4, nS, 4):
            A(f"v_max3_f32 v11, v11, v{SA+k}, v{SA+k+1}")
            A(f"v_max3_f32 v12, v12, v{SA+k+2}, v{SA+k+3}")
        A("v_max_f32 v11, v11, v12")
        A("v_mov_b32 v12, v11")
        A("s_nop 1")
        A("v_permlane32_swap_b32 v11, v12")
        A("s_nop 1")
        A("v_max_f32 v11, v11, v12")
        A("v_mov_b32 v12, v11")
        A("s_nop 1")
        A("v_permlane16_swap_b32 v11, v12")
        A("s_nop 1")
        A(f"v_max_f32 v{vM}, v11, v12")
        A(f"v_mul_f32 v12, s{sC}, v{vM}")
        for k in range(nS):
            A(f"v_fma_f32 v{SA+k}, v{SA+k}, s{sC}, -v12")
        for k in range(nS):
            A(f"v_exp_f32 v{SA+k}, v{SA+k}")
        A("s_nop 0")
        A(f"v_add_f32 v{vLs}, v{SA}, v{SA+1}")
        A(f"v_add_f32 v13, v{SA+2}, v{SA+3}")
        for k in range(4, nS, 2):
            r_ = vLs if (k >> 1) & 1 == 0 else 13
            A(f"v_add_f32 v11, v{SA+k}, v{SA+k+1}")
            A(f"v_add_f32 v{r_}, v{r_}, v11")
        A(f"v_add_f32 v{vLs}, v{vLs}, v13")
        for n in range(NA):
            Sn = SA + 4 * n
            A(f"v_cvt_pk_bf16_f32 v{Sn}, v{Sn}, v{Sn+1}")
            A(f"v_cvt_pk_bf16_f32 v{Sn+1}, v{Sn+2}, v{Sn+3}")
        for n in range(NA):
            Sn = SA + 4 * n
            A(f"v_and_b32 v{Sn}, v{Sn}, v{vMsk}")
            A(f"v_and_b32 v{Sn+1}, v{Sn+1}, v{vMsk}")
        for n in range(NA):
            Sn = SA + 4 * n
            A(f"v_mov_b32_dpp v{Sn+2}, v{Sn} row_shr:2 {DPPM} bound_ctrl:0")
            A(f"v_mov_b32_dpp v{Sn+3}, v{Sn+1} row_shr:2 {DPPM} bound_ctrl:0")
    for n in range(NA):
        for i2 in range(4):
            i = 8 * NA + 8 * n + 2 * i2
            wait_for(i + 1)
            a_, b_ = slot(i), slot(i + 1)
            for d in range(4 if not nocomp else 0):
                A(f"v_perm_b32 v{F+4*(2*d)+i2}, v{b_+d}, v{a_+d}, s{sSelLo}")
                A(f"v_perm_b32 v{F+4*(2*d+1)+i2}, v{b_+d}, v{a_+d}, s{sSelHi}")
            issue_next(); issue_next()
        if n == opt.get("late", 7):
            A(f"s_cmp_lg_u32 s{sW}, 7")
            A("s_cbranch_scc1 L_nolate")
            A(f"v_mov_b32 v11, {L_FLAG}")
            A("v_mov_b32 v12, 1")
            A("ds_write_b32 v11, v12 offset:4")
            A.lab("L_nolate")
        if stamps and n in (1, 3, 5): A(f"s_memrealtime s[{16+2*{1:3,3:4,5:5}[n]}:{17+2*{1:3,3:4,5:5}[n]}]")
        if nocomp: continue
        A("s_nop 1")
        for e in range(8):
            A(f"v_mfma_f32_16x16x32_bf16 {vr(ACC+4*e)}, {vr(SA+4*n)}, {vr(F+4*e)}, {vr(ACC+4*e)}")
    A.c("---- wave finish")
    if stamps:
        A(f"s_memrealtime s[{sTs+4}:{sTs+5}]")
        A("s_waitcnt lgkmcnt(0)")
        if stamps == 1: rec_store(16, 12, DBG_OFF + 0xA0000, 6, RING, wait=False)
    if opt.get("notail"): A("s_branch L_fin")
    if opt.get("tailcut") == 1: A("s_waitcnt vmcnt(0)"); A("s_branch L_fin")
    GT = 252
    A(f"s_memrealtime s[{sTt}:{sTt+1}]")
    A(f"s_lshl_b32 s{sT1}, s{sW}, 11")
    A(f"v_lshlrev_b32 v14, 7, v{vLane}")
    A(f"v_add_u32 v14, s{sT1}, v14")
    A(f"v_mov_b32 v12, v{vLs}")
    A(f"v_mov_b32 v13, {L_GATE}")
    A("s_mov_b64 exec, 0xffff")
    for e in range(8):
        A(f"ds_write_b128 v14, {vr(ACC+4*e)} offset:{L_ACC+16*e}")
    A("s_mov_b64 exec, -1")
    A(f"v_permlane32_swap_b32 v{vLs}, v12")
    A("s_nop 1")
    A(f"v_add_f32 v{vLs}, v{vLs}, v12")
    A(f"v_mov_b32 v12, v{vLs}")
    A(f"s_lshl_b32 s{sT1}, s{sW}, 4")
    A(f"v_lshlrev_b32 v11, 3, v{vLane}")
    A(f"v_permlane16_swap_b32 v{vLs}, v12")
    A(f"v_add_u32 v11, s{sT1}, v11")
    A("s_nop 0")
    A(f"v_add_f32 v{vLs}, v{vLs}, v12")
    A("s_mov_b64 exec, 3")
    A(f"ds_write_b64 v11, v[{vM}:{vLs}] offset:{L_ML}")
    A("s_mov_b64 exec, -1")
    A(f"s_cmp_ge_u32 s{sW}, 4")
    A("s_cbranch_scc1 L_nowo2")
    A(f"v_mov_b32 v11, {L_FLAG}")
    A.lab("L_latespin")
    A("ds_read_b32 v12, v11 offset:4")
    A("s_waitcnt lgkmcnt(0)")
    A(f"v_readfirstlane_b32 s{sT1}, v12")
    A(f"s_cmp_lg_u32 s{sT1}, 0")
    A("s_cbranch_scc1 L_latego")
    A("s_sleep 4")
    A("s_branch L_latespin")
    A.lab("L_latego")
    wo_loads()
    A.lab("L_nowo2")
    A("s_waitcnt lgkmcnt(0)")
    A(f"s_mov_b32 s{sNon}, s{sTs}")
    A(f"s_xor_b32 s{sTt+1}, s{sTt}, s{sTC}")
    A("s_barrier")
    A(f"ds_read_b64 v[{GT}:{GT+1}], v13")
    tst(0)
    A(f"s_cmp_lt_u32 s{sW}, 4")
    A("s_cbranch_scc1 L_h2")
    A(f"s_cmp_gt_u32 s{sW}, 5")
    A("s_cbranch_scc1 L_fin")
    A.c("---- merge: waves 4,5")
    A(f"v_and_b32 v11, 7, v{vLane}")
    A(f"v_lshlrev_b32 v11, 4, v11")
    A(f"v_bfe_u32 v12, v{vLane}, 3, 1")
    A(f"v_lshlrev_b32 v12, 3, v12")
    A("v_add_u32 v11, v11, v12")
    A(f"ds_read_b64 v[14:15], v11 offset:{L_ML}")
    A(f"s_sub_u32 s{sT1}, s{sW}, 4")
    A(f"s_lshl_b32 s{sT1}, s{sT1}, 10")
    A(f"v_lshlrev_b32 v13, 4, v{vLane}")
    A(f"v_add_u32 v13, s{sT1}, v13")
    for w in range(8):
        A(f"ds_read_b128 {vr(RG+4*w)}, v13 offset:{L_ACC+2048*w}")
    A(f"s_lshl_b32 s{sT2}, s{sG}, 4")
    A(f"s_add_u32 s{sT2}, s{sT2}, s{sJ}")
    A(f"s_mul_i32 s{sT2}, s{sT2}, {H2_PSTRIDE}")
    A(f"s_add_u32 s{sT2}, s{sT2}, {H2_OFF}")
    A(f"s_lshr_b32 s{sT1}, s{sT1}, 2")
    A(f"s_add_u32 s{sT1}, s{sT1}, s{sT2}")
    A(f"s_mov_b32 s{sCons}, s{sT2}")
    A(f"v_lshlrev_b32 v13, 2, v{vLane}")
    A(f"s_mov_b32 s{sEx}, 0x55555555"); A(f"s_mov_b32 s{sEx+1}, 0x55555555")
    A("s_waitcnt lgkmcnt(8)")
    A("v_mov_b32 v11, v14")
    A("s_nop 1")
    for ctl in RED8:
        A(f"v_max_f32_dpp v11, v11, v11 {ctl} {DPPM}")
        A("s_nop 1")
    A("v_sub_f32 v12, v14, v11")
    A(f"v_mul_f32 v12, s{sC}, v12")
    A("v_exp_f32 v12, v12")
    A("s_nop 0")
    A("v_mul_f32 v15, v15, v12")
    for k in range(16):
        A(f"v_readlane_b32 s{16+k}, v12, {k}")
    for ctl in RED8:
        A(f"v_add_f32_dpp v15, v15, v15 {ctl} {DPPM}")
        A("s_nop 1")
    A(f"v_bfe_u32 v10, v{vLane}, 1, 1")
    A(f"v_mul_lo_u32 v10, v10, s{sTC}")
    A(f"v_xor_b32 v10, s{sTt}, v10")
    for i in range(4): A(f"v_mov_b32 v{TL+2*i+1}, v10")
    A("s_waitcnt lgkmcnt(0)")
    for i in range(4):
        A(f"v_mul_f32 v{TL+2*i}, s{16+8*(i&1)}, v{RG+i}")
    for w in range(1, 8):
        for i in range(4):
            A(f"v_fma_f32 v{TL+2*i}, v{RG+4*w+i}, s{16+8*(i&1)+w}, v{TL+2*i}")
    A("s_nop 1")
    for i in range(4):
        A(f"v_mov_b32_dpp v{TL+8+i}, v{TL+2*i} quad_perm:[1,1,3,3] {DPPM}")
    for i in range(4):
        A(f"v_cvt_pk_bf16_f32 v{TL+2*i}, v{TL+2*i}, v{TL+8+i}")
    A(f"s_mov_b64 exec, s[{sEx}:{sEx+1}]")
    for i in range(4):
        half, h = i >> 1, i & 1
        A(f"buffer_store_dwordx2 {vr(TL+2*i,2)}, v13, {sr(WS_)}, s{sT1} offen offset:{(h*256+128*half)*4} sc1")
    A("s_mov_b64 exec, -1")
    if stamps:
        A("s_memrealtime s[30:31]"); A("s_waitcnt lgkmcnt(0)")
    A(f"s_cmp_lg_u32 s{sW}, 4")
    A("s_cbranch_scc1 L_fin")
    A(f"v_readlane_b32 s16, v11, 0"); A(f"v_readlane_b32 s17, v11, 8")
    A(f"v_readlane_b32 s18, v15, 0"); A(f"v_readlane_b32 s19, v15, 8")
    A(f"v_and_b32 v13, 1, v{vLane}")
    A("v_cmp_eq_u32 vcc, 0, v13")
    A(f"v_mov_b32 v{TL+8}, s17"); A(f"v_mov_b32 v{TL+10}, s19")
    A(f"v_mov_b32 v12, s16"); A(f"v_mov_b32 v14, s18")
    A(f"v_mov_b32 v{TL+9}, s{sTt}")
    A(f"v_mov_b32 v{TL+11}, s{sTt+1}")
    A(f"v_cndmask_b32 v{TL+8}, v{TL+8}, v12, vcc")
    A(f"v_cndmask_b32 v{TL+10}, v{TL+10}, v14, vcc")
    A(f"v_lshlrev_b32 v13, 4, v{vLane}")
    A("s_mov_b64 exec, 0xf")
    A(f"buffer_store_dwordx4 {vr(TL+8)}, v13, {sr(WS_)}, s{sCons} offen offset:2048 sc1")
    A("s_branch L_fin")
    A.lab("L_h2")
    if opt.get("tailcut") == 2: A("s_waitcnt vmcnt(0)"); A("s_branch L_fin")
    A.c("---- H2 consume: wave 0 polls; waves 0..3 project, tau = w")
    vRd, vYr, vH3, vYwB = TL+4, TL+5, TL+6, TL+7
    A(f"v_lshrrev_b32 v11, 1, v{vGq}")
    A(f"v_mul_u32_u24 v11, 112, v11")
    A(f"v_and_b32 v12, 1, v{vGq}")
    A(f"v_lshlrev_b32 v13, 1, v{vR}")
    A(f"v_add3_u32 v11, v11, v12, v13")
    A(f"v_lshlrev_b32 v{vH3}, 4, v11")
    A(f"v_lshrrev_b32 v11, 2, v{vLane}")
    A(f"v_mul_u32_u24 v11, {H3_PSTRIDE}, v11")
    A(f"v_and_b32 v12, 3, v{vLane}")
    A(f"v_lshlrev_b32 v12, 4, v12")
    A(f"v_add_u32 v{vRd}, v11, v12")
    A(f"s_mov_b32 s{sA0}, 0xffff0000"); A(f"s_mov_b32 s{sA1}, 0xffff0000")
    A(f"s_cmp_eq_u32 s{sW}, 3")
    A(f"s_cselect_b32 s{sEx}, 0x00ff00ff, -1")
    A(f"s_cselect_b32 s{sEx+1}, 0x00ff00ff, -1")
    A(f"s_cmp_lg_u32 s{sW}, 0")
    A("s_cbranch_scc1 L_h2wait")
    A(f"s_mul_i32 s{sT1}, s{sG}, {16*H2_PSTRIDE}")
    A(f"s_add_u32 s{sT1}, s{sT1}, {H2_OFF}")
    A(f"s_lshl_b32 s{sT2}, s{sB}, 4")
    A(f"s_add_u32 s{sT2}, s{sT2}, s{sT1}")
    A(f"s_lshl_b32 s{sT0}, s{sJ}, 7")
    A(f"s_add_u32 s{sT1}, s{sT1}, s{sT0}")
    A(f"v_mul_u32_u24 v11, {H2_PSTRIDE}, v{vR}")
    A(f"v_lshlrev_b32 v12, 5, v{vGq}")
    A("v_add_u32 v12, v11, v12")
    A(f"s_mov_b32 s{sSpin}, 0")
    def h2issue():
        for k in range(2):
            A(f"buffer_load_dwordx4 {vr(F+4*k)}, v12, {sr(WS_)}, s{sT1} offen offset:{16*k} sc1")
        A(f"buffer_load_dwordx4 {vr(F+8)}, v11, {sr(WS_)}, s{sT2} offen offset:2048 sc1")
    A("s_waitcnt vmcnt(0)")
    wo_perm()
    if stamps:
        A("s_memrealtime s[28:29]"); A("s_waitcnt lgkmcnt(0)")
    A.lab("L_h2poll")
    h2issue()
    A("s_waitcnt vmcnt(0)")
    tag_check(F, 3, 13, 14)
    A("s_cbranch_vccz L_h2got")
    if opt.get("sl2", 0): A(f"s_sleep {opt['sl2']}")
    A(f"s_add_u32 s{sSpin}, s{sSpin}, 1")
    A(f"s_cmp_lt_u32 s{sSpin}, {maxspin}")
    A("s_cbranch_scc1 L_h2poll")
    A.lab("L_h2got")
    tst(1)
    if stamps: A(f"s_mov_b32 s41, s{sSpin}")
    mreg, lreg = F+8, F+10
    O = F + 12
    A(f"v_mov_b32 v13, v{mreg}")
    for k in range(4):
        A(f"v_lshlrev_b32 v{O+2*k}, 16, v{F+2*k}")
        A(f"v_and_b32 v{O+2*k+1}, 0xffff0000, v{F+2*k}")
    for ctl in RED8:
        A(f"v_max_f32_dpp v13, v13, v13 {ctl} {DPPM}")
        A("s_nop 1")
    A(f"v_sub_f32 v13, v{mreg}, v13")
    A(f"v_mul_f32 v13, s{sC}, v13")
    A("v_exp_f32 v13, v13")
    A("s_nop 0")
    A(f"v_mul_f32 v14, v13, v{lreg}")
    for k in range(8):
        A(f"v_mul_f32 v{O+k}, v13, v{O+k}")
    for ctl in RED8:
        A(f"v_add_f32_dpp v14, v14, v14 {ctl} {DPPM}")
        for k in range(8):
            A(f"v_add_f32_dpp v{O+k}, v{O+k}, v{O+k} {ctl} {DPPM}")
    A(f"v_cmp_gt_u32 vcc, 8, v{vR}")
    A("v_rcp_f32 v14, v14")
    A("s_waitcnt lgkmcnt(0)")
    A(f"v_cndmask_b32 v15, v{GT+1}, v{GT}, vcc")
    A("v_mul_f32 v14, v14, v15")
    for k in range(8):
        A(f"v_mul_f32 v{O+k}, v14, v{O+k}")
    for i in range(4):
        A(f"v_cvt_pk_bf16_f32 v{AF+i}, v{O+2*i}, v{O+2*i+1}")
    A(f"v_lshlrev_b32 v11, 4, v{vLane}")
    A(f"ds_write_b128 v11, {vr(AF)} offset:{L_QF}")
    A("s_waitcnt lgkmcnt(0)")
    A("s_barrier")
    A("s_branch L_h2go")
    A.lab("L_h2wait")
    A("s_waitcnt vmcnt(0)")
    wo_perm()
    A(f"v_lshlrev_b32 v11, 4, v{vLane}")
    A("s_barrier")
    A(f"ds_read_b128 {vr(AF)}, v11 offset:{L_QF}")
    A("s_waitcnt lgkmcnt(0)")
    A.lab("L_h2go")
    for e in range(8):
        A(f"v_mfma_f32_16x16x32_bf16 {vr(ACC+4*e)}, {vr(AF)}, {vr(KA+4*e)}, 0")
    A(f"s_mul_i32 s{sT1}, s2, {H3_PSTRIDE}")
    A(f"s_lshl_b32 s{sT2}, s{sW}, 9")
    A(f"s_add_u32 s{sT1}, s{sT1}, s{sT2}")
    A(f"s_add_u32 s{sT1}, s{sT1}, {H3_OFF}")
    A(f"v_mov_b32 v{F+1}, s{sTt}"); A(f"v_mov_b32 v{F+3}, s{sTt+1}")
    A("s_nop 4")
    for k in range(4):
        A(f"v_cndmask_b32 v{F+8+k}, v{ACC+4*k}, v{ACC+4*(k+4)}, s[{sA0}:{sA1}]")
    A(f"v_cvt_pk_bf16_f32 v{F}, v{F+8}, v{F+9}")
    A(f"v_cvt_pk_bf16_f32 v{F+2}, v{F+10}, v{F+11}")
    A(f"s_mov_b64 exec, s[{sEx}:{sEx+1}]")
    A(f"buffer_store_dwordx4 {vr(F)}, v{vH3}, {sr(WS_)}, s{sT1} offen sc1")
    A("s_mov_b64 exec, -1")
    tst(2)
    if opt.get("tailcut") == 3: A("s_branch L_fin")
    A(f"s_cmp_ge_u32 s2, {NRED}")
    A("s_cbranch_scc1 L_fin")
    A(f"s_lshl_b32 s{sT1}, s2, 6")
    A(f"s_mul_i32 s{sT2}, s{sW}, {64*H3_PSTRIDE}")
    A(f"s_add_u32 s{sT1}, s{sT1}, s{sT2}")
    A(f"s_add_u32 s{sT1}, s{sT1}, {H3_OFF}")
    A(f"s_mov_b32 s{sSpin}, 0")
    HB = H + 48
    def h3issue(r):
        A(f"s_mov_b32 s{sT2}, s{sT1}")
        for k in range(4):
            A(f"buffer_load_dwordx4 {vr(r+4*k)}, v{vRd}, {sr(WS_)}, s{sT2} offen sc1")
            if k < 3: A(f"s_add_u32 s{sT2}, s{sT2}, {16*H3_PSTRIDE}")
    if opt.get("dbl3", 0):
        g3 = opt.get("dbl3")
        h3issue(H)
        A.lab("L_h3poll")
        A(f"s_sleep {g3}")
        h3issue(HB)
        A("s_waitcnt vmcnt(4)")
        tag_check(H, 4, 13, 14)
        A("s_cbranch_vccz L_h3got")
        A(f"s_sleep {g3}")
        h3issue(H)
        A("s_waitcnt vmcnt(4)")
        tag_check(HB, 4, 13, 14)
        A("s_cbranch_vccz L_h3gotB")
        A(f"s_add_u32 s{sSpin}, s{sSpin}, 1")
        A(f"s_cmp_lt_u32 s{sSpin}, {maxspin}")
        A("s_cbranch_scc1 L_h3poll")
        A.lab("L_h3gotB")
        A("s_waitcnt vmcnt(0)")
        for k in range(0, 16, 2): A(f"v_mov_b32 v{H+k}, v{HB+k}")
    else:
        A.lab("L_h3poll")
        A(f"s_mov_b32 s{sT2}, s{sT1}")
        for k in range(4):
            A(f"buffer_load_dwordx4 {vr(H+4*k)}, v{vRd}, {sr(WS_)}, s{sT2} offen sc1")
            if k < 3: A(f"s_add_u32 s{sT2}, s{sT2}, {16*H3_PSTRIDE}")
        A("s_waitcnt vmcnt(0)")
        tag_check(H, 4, 13, 14)
        A("s_cbranch_vccz L_h3got")
        if opt.get("sl3", 0): A(f"s_sleep {opt['sl3']}")
        A(f"s_add_u32 s{sSpin}, s{sSpin}, 1")
        A(f"s_cmp_lt_u32 s{sSpin}, {maxspin}")
        A("s_cbranch_scc1 L_h3poll")
    A.lab("L_h3got")
    tst(3)
    if stamps: A(f"s_mov_b32 s42, s{sSpin}")
    Y = H + 16
    for k in range(4):
        for half in range(2):
            d = H + 4*k + 2*half
            lo, hi = Y + 2*half, Y + 2*half + 1
            if k == 0:
                A(f"v_lshlrev_b32 v{lo}, 16, v{d}")
                A(f"v_and_b32 v{hi}, 0xffff0000, v{d}")
            else:
                A(f"v_lshlrev_b32 v13, 16, v{d}")
                A(f"v_and_b32 v14, 0xffff0000, v{d}")
                A(f"v_add_f32 v{lo}, v{lo}, v13")
                A(f"v_add_f32 v{hi}, v{hi}, v14")
    A("s_nop 1")
    allreduce_add([Y, Y+1, Y+2, Y+3], [Y+4, Y+5, Y+6, Y+7], ["row_ror:4", "row_ror:8"])
    A(f"s_lshl_b32 s{sT1}, s{sW}, 6")
    A(f"v_lshlrev_b32 v11, 4, v{vLane}")
    A(f"v_add_u32 v12, s{sT1}, v11")
    A("s_mov_b64 exec, 0xf")
    A(f"ds_write_b128 v12, {vr(Y)} offset:{L_Y2}")
    A("s_waitcnt lgkmcnt(0)")
    A("s_barrier")
    A(f"s_cmp_lg_u32 s{sW}, 0")
    A("s_cbranch_scc1 L_fin")
    for w in range(4):
        A(f"ds_read_b128 {vr(Y+8+4*w)}, v11 offset:{L_Y2+64*w}")
    A("s_waitcnt lgkmcnt(0)")
    for i in range(4):
        A(f"v_add_f32 v{Y+8+i}, v{Y+8+i}, v{Y+12+i}")
        A(f"v_add_f32 v{Y+16+i}, v{Y+16+i}, v{Y+20+i}")
    for i in range(4):
        A(f"v_add_f32 v{Y+8+i}, v{Y+8+i}, v{Y+16+i}")
    A(f"v_cvt_pk_bf16_f32 v{Y+8}, v{Y+8}, v{Y+9}")
    A(f"v_cvt_pk_bf16_f32 v{Y+9}, v{Y+10}, v{Y+11}")
    A(f"s_lshl_b32 s{sT1}, s2, 5")
    A(f"v_lshlrev_b32 v11, 3, v{vLane}")
    A(f"buffer_store_dwordx2 {vr(Y+8,2)}, v11, {sr(OUT_)}, s{sT1} offen")
    A.lab("L_fin")
    if stamps:
        A("s_mov_b64 exec, -1")
        A(f"s_memrealtime s[{sTs+6}:{sTs+7}]")
        A("s_waitcnt lgkmcnt(0)")
        rec_store(sTs, 8, DBG_OFF, 5, RING)
        rec_store(32, 8, DBG_OFF + 0x60000, 6, RING)
        A("s_mov_b32 s32, s41"); A("s_mov_b32 s33, 0"); A("s_mov_b32 s34, s42"); A("s_mov_b32 s35, 0")
        for k in range(4): A(f"s_mov_b32 s{36+k}, s{28+k}")
        rec_store(32, 8, DBG_OFF + 0x60000 + 32, 6, RING)
    A.lab("L_end")
    A("s_endpgm")

    out = [HEADER.rstrip("\n"),
           "; Override launch geometry by editing the next line (default: block=256,",
           "; grid=ceil(out_elems/256), lds=0). Harness parses it; keep it on one line.",
           f"; @launch grid=(256,1,1) block=(512,1,1) lds={LDS_BYTES}",
           '.amdgcn_target "amdgcn-amd-amdhsa--gfx950"', ".text", f".globl {KNAME}", ".p2align 8",
           f".type {KNAME},@function", f"{KNAME}:"]
    body = [l for l in A.L if l is not None]
    if any("CPF_DELTA" in l for l in body):
        k = next(i for i, l in enumerate(body) if "s_getpc_b64" in l)
        body.insert(k + 1, "L_after_getpc:")
        body = [l.replace("CPF_DELTA", f"(L_after_getpc-{KNAME})") for l in body]
    out += body
    out += ['.section .rodata,"a"', ".p2align 6", f".amdhsa_kernel {KNAME}",
            "  .amdhsa_next_free_vgpr 256", "  .amdhsa_next_free_sgpr 102", "  .amdhsa_accum_offset 256",
            "  .amdhsa_group_segment_fixed_size 0", "  .amdhsa_kernarg_size 112", "  .amdhsa_user_sgpr_count 2",
            "  .amdhsa_user_sgpr_kernarg_segment_ptr 1", "  .amdhsa_system_sgpr_workgroup_id_x 1", ".end_amdhsa_kernel"]
    return "\n".join(out) + "\n"

if __name__ == "__main__":
    ap = argparse.ArgumentParser()
    ap.add_argument("-o", default="gated_mix__gqa_block_cached__gqa_block_cached__decode.s")
    ap.add_argument("--stamps", type=int, nargs="?", const=1, default=0)
    ap.add_argument("--nt", default="nt")
    ap.add_argument("--opt", default="")
    a = ap.parse_args()
    open(a.o, "w").write(gen(stamps=a.stamps, nt=a.nt, opt=eval("dict(%s)" % a.opt)))
    print("wrote", a.o)
```
